```python
import torch

def _softmax(x, axis=-1):
    return torch.softmax(x, dim=axis)
def _gelu(x):
    return torch.nn.functional.gelu(x, approximate="tanh")
def _silu(x):
    return torch.nn.functional.silu(x)
def _sigmoid(x):
    return torch.sigmoid(x)
def _layernorm(x, axis=-1, eps=1e-5):
    m = x.mean(dim=axis, keepdim=True)
    v = x.var(dim=axis, keepdim=True, unbiased=False)
    return (x - m) / torch.sqrt(v + eps)
def _scatter_add(tgt, idx, src, axis=0):
    return tgt.clone().index_add_(axis, idx, src)
def _segment_sum(src, seg, n):
    out = torch.zeros((n,) + src.shape[1:], dtype=src.dtype)
    return out.index_add_(0, seg, src)
def _pad(x, pw):
    flat = tuple(v for pair in reversed(pw) for v in pair)
    return torch.nn.functional.pad(x, flat)

kernel_name = 'gated_mix__softmax_full_mha__linear_attn_block__prompt'

def setup_inputs():

    _w = (lambda a: (lambda t: t.to(torch.bfloat16) if t.is_floating_point() else t)(torch.as_tensor(a)))
    def _A_setup():
        B, S, D = 1, 2048, 512
        return {
            "x": _w((lambda *s: torch.randn(*s, dtype=torch.bfloat16) * 0.05)(B, S, D)),
            "wqkv": _w((lambda *s: torch.randn(*s, dtype=torch.bfloat16) * 0.8)(D, 3 * D)),
            "wo": _w((lambda *s: torch.randn(*s, dtype=torch.bfloat16) * 0.05)(D, D)),
        }
    _A_in = _A_setup()

    def _B_setup():
        B, S, D = 1, 2048, 512
        return {
            "x": _w((lambda *s: torch.randn(*s, dtype=torch.bfloat16) * 0.05)(B, S, D)),
            "wqkv": _w((lambda *s: torch.randn(*s, dtype=torch.bfloat16) * 0.8)(D, 3 * D)),
            "wo": _w((lambda *s: torch.randn(*s, dtype=torch.bfloat16) * 0.2)(D, D)),
        }
    _B_in = _B_setup()

    return {
        "A_x": _A_in["x"],
        "A_wqkv": _A_in["wqkv"],
        "A_wo": _A_in["wo"],
        "B_x": _B_in["x"],
        "B_wqkv": _B_in["wqkv"],
        "B_wo": _B_in["wo"],
        "gate_w": _w((lambda *s: torch.randn(*s, dtype=torch.bfloat16) * 0.05)(512) * 16.0),
    }

def reference(A_x, A_wqkv, A_wo, B_x, B_wqkv, B_wo, gate_w):
    def _A_ref(x, wqkv, wo):
        B, S, D = x.shape
        H = 32; Dh = D // H
        qkv = (lambda x, *d: x.permute(*d))((x @ wqkv).reshape(B, S, 3, H, Dh), 2, 0, 3, 1, 4)
        q, k, v = qkv[0], qkv[1], qkv[2]
        scale = Dh ** -0.5
        scores = torch.einsum("bhqd,bhkd->bhqk", q, k) * scale
        p = _softmax(scores, axis=-1)
        o = torch.einsum("bhqk,bhkd->bhqd", p, v)
        return (lambda x, *d: x.permute(*d))(o, 0, 2, 1, 3).reshape(B, S, D) @ wo

    def _B_ref(x, wqkv, wo):
        B, S, D = x.shape
        H = 32; Dh = D // H
        qkv = (lambda x, *d: x.permute(*d))((x @ wqkv).reshape(B, S, 3, H, Dh), 2, 0, 3, 1, 4)
        q, k, v = qkv[0], qkv[1], qkv[2]
        phi = lambda t: torch.where(t > 0, t + 1, torch.exp(t)) + 1e-6
        pq, pk = phi(q), phi(k)
        kv = torch.einsum("bhsd,bhse->bhde", pk, v)
        z = torch.einsum("bhsd->bhd", pk)
        num = torch.einsum("bhqd,bhde->bhqe", pq, kv)
        den = torch.einsum("bhqd,bhd->bhq", pq, z)[..., None] + 1e-6
        o = num / den
        return (lambda x, *d: x.permute(*d))(o, 0, 2, 1, 3).reshape(B, S, D) @ wo

    x = A_x
    g = _sigmoid((x * gate_w).sum(-1, keepdims=True))
    a = _A_ref(x, A_wqkv, A_wo)
    b = _B_ref(x, B_wqkv, B_wo)
    return g * a + (1 - g) * b
```

```python
import re

TRANS = ("v_exp_f32", "v_log_f32", "v_rcp_f32", "v_rsq_f32", "v_sqrt_f32", "v_sin_f32", "v_cos_f32")


def regs(tok):
    tok = tok.strip()
    tok = tok.lstrip("-")
    m = re.fullmatch(r"abs\((.*)\)", tok) or re.fullmatch(r"\|(.*)\|", tok)
    if m:
        tok = m.group(1)
    m = re.fullmatch(r"([vsa])\[(\d+):(\d+)\]", tok)
    if m:
        return {f"{m.group(1)}{i}" for i in range(int(m.group(2)), int(m.group(3)) + 1)}
    if re.fullmatch(r"[vsa]\d+", tok):
        return {tok}
    if tok in ("vcc", "vcc_lo", "vcc_hi"):
        return {"vcc"}
    if tok in ("exec", "exec_lo", "exec_hi"):
        return {"exec"}
    if tok == "m0":
        return {"m0"}
    return set()


class Ins:
    pass


def parse(line):
    line = line.split(";")[0].strip()
    if not line or line.startswith(".") or line.endswith(":"):
        return None
    parts = line.split(None, 1)
    op = parts[0]
    rest = parts[1] if len(parts) > 1 else ""
    ops = [o.strip() for o in rest.split(",")] if rest else []
    mods = ""
    if ops:
        l = ops[-1].split()
        if l:
            ops[-1] = l[0]
            mods = " ".join(l[1:])
    i = Ins()
    i.text = line
    i.op = op
    base = re.sub(r"_(e32|e64|sdwa|dpp)$", "", op)
    i.base = base
    i.w = set()
    i.r = set()
    i.kind = "other"
    i.states = 1
    i.srcc = set()
    i.ab = set()
    R = [regs(o) for o in ops]
    if base == "s_nop":
        i.states = int(ops[0], 0) + 1
        i.kind = "salu"
    elif base.startswith("v_mfma") or base.startswith("v_smfmac"):
        i.kind = "mfma"
        i.passes = 8 if "32x32" in base else 4
        i.w = R[0]
        if base.startswith("v_smfmac"):
            i.srcc = R[0]
            i.ab = R[1] | R[2] | R[3]
        else:
            i.srcc = R[3]
            i.ab = R[1] | R[2]
        i.r = i.srcc | i.ab
    elif base.startswith("v_cmp"):
        i.kind = "valu"
        i.w = R[0]
        for x in R[1:]:
            i.r |= x
    elif base in ("v_readfirstlane_b32", "v_readlane_b32"):
        i.kind = "valu"
        i.w = R[0]
        for x in R[1:]:
            i.r |= x
    elif base.startswith("v_permlane"):
        i.kind = "valu"
        i.w = R[0] | R[1]
        i.r = R[0] | R[1]
    elif base.startswith("v_"):
        i.kind = "valu"
        i.w = set(R[0])
        k = 1
        if base in ("v_add_co_u32", "v_sub_co_u32", "v_addc_co_u32", "v_subb_co_u32"):
            i.w |= R[1]
            k = 2
        for x in R[k:]:
            i.r |= x
        if base in ("v_fmac_f32", "v_dot2c_f32_bf16", "v_writelane_b32"):
            i.r |= R[0]
    elif base.startswith("buffer_load") or base.startswith("global_load"):
        i.kind = "vmem"
        if "lds" in mods.split() or "_lds_" in base:
            i.lds_dma = True
            for x in R:
                i.r |= x
            i.r |= {"m0"}
        else:
            i.w = R[0]
            for x in R[1:]:
                i.r |= x
    elif base.startswith("buffer_store") or base.startswith("buffer_atomic"):
        i.kind = "vmem"
        for x in R:
            i.r |= x
        if "x4" in base or "x3" in base:
            i.store_data = R[0]
    elif base.startswith("global_store"):
        i.kind = "vmem"
        for x in R:
            i.r |= x
        if "x4" in base or "x3" in base:
            i.store_data = R[1]
    elif base.startswith("ds_read") or base.startswith("ds_bpermute"):
        i.kind = "ds"
        i.w = R[0]
        for x in R[1:]:
            i.r |= x
    elif base.startswith("ds_"):
        i.kind = "ds"
        for x in R:
            i.r |= x
    elif base.startswith("s_"):
        i.kind = "salu"
        if R and not base.startswith("s_cmp") and not base.startswith("s_cbranch") and base not in (
            "s_waitcnt", "s_barrier", "s_branch", "s_setprio", "s_endpgm", "s_sleep"):
            i.w = R[0]
            for x in R[1:]:
                i.r |= x
        else:
            for x in R:
                i.r |= x
    return i


def check(text, name=""):
    ins = []
    for ln, line in enumerate(text.splitlines(), 1):
        p = parse(line)
        if p is not None:
            p.ln = ln
            ins.append(p)
    errs = []
    for n, c in enumerate(ins):
        dist = 0
        for m in range(n - 1, max(-1, n - 24), -1):
            p = ins[m]
            need = 0
            why = ""
            vw = {r for r in p.w if r[0] in "va"}
            sw = {r for r in p.w if r[0] == "s" or r == "vcc"}
            if p.kind == "valu":
                if c.kind == "mfma" and vw & c.r:
                    need, why = 2, "valu->mfma"
                if p.base in TRANS and c.kind in ("valu",) and c.base not in TRANS and vw & c.r:
                    need, why = max(need, 1), "trans->valu"
                if c.base.startswith("v_permlane") and vw & c.r:
                    need, why = max(need, 2), "valu->permlane"
                if c.base in ("v_readfirstlane_b32", "v_readlane_b32") and vw & c.r:
                    need, why = max(need, 1), "valu->readlane"
                if "dpp" in c.op and vw & c.r:
                    need, why = max(need, 2), "valu->dpp"
                if c.kind == "vmem" and sw & c.r:
                    need, why = max(need, 5), "valu sgpr->vmem"
                if c.kind == "valu" and sw & c.r:
                    need, why = max(need, 2), "valu sgpr->valu"
                if p.base.startswith("v_dot2") and vw & (c.r | c.w) and not (
                        c.base == p.base and not (vw & (c.r - regs(c.text.split(",")[-1].split()[0])))):
                    need, why = max(need, 3), "dot->other"
            if p.kind == "mfma":
                lat = 12 if p.passes == 8 else 8
                if c.kind == "mfma":
                    if p.w & c.ab:
                        need, why = lat, "mfma->mfma AB"
                    elif p.w & c.srcc and not (p.w == c.srcc and p.passes == c.passes):
                        need, why = lat - 2, "mfma->mfma C overlap"
                elif c.kind == "valu" and p.w & (c.r | c.w):
                    need, why = lat, "mfma->valu"
                elif c.kind in ("vmem", "ds") and p.w & (c.r | c.w):
                    need, why = lat, "mfma->mem"
                if c.kind == "valu" and p.srcc & c.w:
                    w = 7 if p.passes == 8 else 3
                    if w > need:
                        need, why = w, "mfma srcC WAR"
            if p.kind == "salu" and "m0" in p.w and getattr(c, "lds_dma", False):
                need, why = max(need, 1), "m0->dma"
            if getattr(p, "store_data", None) and p.store_data & c.w:
                need, why = max(need, 2 if c.kind == "valu" else 1), "store data WAR"
            if need > dist:
                errs.append(f"{name}:{c.ln}: {why}: need {need} has {dist}: [{p.text}] -> [{c.text}]")
            dist += p.states
    return errs


if __name__ == "__main__":
    import sys
    e = check(open(sys.argv[1]).read(), sys.argv[1])
    print("\n".join(e) if e else "no hazards found")
```

```python
import struct
import sys

sys.path.insert(0, "gen")
import hazard

KNAME = "gated_mix__softmax_full_mha__linear_attn_block__prompt_kernel"


def f32(x):
    return "0x%08x" % struct.unpack("<I", struct.pack("<f", x))[0]


LOG2E = 1.4426950408889634

WS_KV = 0x000000
HEAD_STRIDE = 0x20000
WS_P = 0x400000
WS_OB = 0x500000
WS_OA = 0x700000
WS_FKV = 0x900000
WS_FP = 0x908000
WS_FOB = 0x920000
WS_FOA = 0x930000
WS_DIAG = 0xA00000
WS_SIZE = 0xB00000

L_X = 0
L_RING = 65536
L_STASH = 65536
L_WOB = 0
L_WOA = 81920
L_RED = 0
L_MISC = 147456
L_GATE = L_MISC
L_GP = L_MISC + 1024
L_NONCE = L_MISC + 1536
L_BAD = L_MISC + 1540
L_LX = L_MISC + 2048
L_MX = L_MISC + 4096
LDS_BYTES = 163840

SRD_X, SRD_WA, SRD_WB, SRD_WS, SRD_W2 = 4, 8, 12, 16, 20
SRD_OA, SRD_OB, SRD_OUT, SRD_DBG, SRD_G = 24, 28, 32, 36, 40
sQUAD, sRB, sROT, sWAVE, sNONCE = 44, 45, 46, 47, 48
sT0, sT1, sT2, sT3, sT4, sT5 = 49, 50, 51, 52, 53, 54
sXB, sWB1, sWB2 = 55, 56, 57
sKVB, sKVO, sKVS = 58, 59, 60
sVMASK = 62
sRETRY, sSPIN = 64, 65
sHD, sKH, sTILE = 66, 67, 68
sC1, sC2, sC3 = 69, 70, 71
sHMASK = 72
sKROT = 74
sSTAMP = 76
sST0 = 80

SPIN_MAX = 200000


class G:
    def __init__(self, opt):
        self.o = []
        self.opt = opt
        self.nlabel = 0
        self.nstamp = 0

    def e(self, s):
        for line in s.split("\n"):
            line = line.strip()
            if line:
                self.o.append(line if line.endswith(":") else "    " + line)

    def label(self, p):
        self.nlabel += 1
        return f"L_{p}_{self.nlabel}"

    def vm_reset(self):
        self.vm = []

    def vm_issue(self, tag, n=1, optional=False):
        self.vm += [(tag, optional)] * n

    def vm_wait(self, *tags):
        last = max(i for i, (t, _) in enumerate(self.vm) if t in tags)
        k = sum(1 for t, o in self.vm[last + 1:] if not o)
        assert k <= 63
        self.e(f"s_waitcnt vmcnt({k})")

    def stamp(self, idx):
        if not self.opt.get("diag"):
            return
        self.e(f"s_memrealtime s[{sSTAMP}:{sSTAMP+1}]\ns_waitcnt lgkmcnt(0)\ns_mov_b32 s{sST0+idx}, s{sSTAMP}")


def vr(b, n):
    return f"v[{b}:{b+n-1}]"


def srd(b):
    return f"s[{b}:{b+3}]"


A_Q = 4
A_PQ = 12
A_SA, A_SB = 16, 32
A_OA, A_OB = 48, 64
A_CA, A_CB = 80, 96
A_BATCH = 112
A_OBF = 112
A_ACC = 144
A_DN = 176
A_WF = 176
A_VO = 192
A_T = 196
A_K = 200
A_V0 = 216
A_V1 = 232
A_VK, A_VV, A_IDX, A_G, A_G1, A_POLL, A_PA, A_LANE = 248, 249, 250, 251, 252, 253, 254, 255


def spin_check(g, reload, tag):
    l0, l1 = g.label(tag), g.label(tag + "ok")
    g.e(f"""s_mov_b32 s{sSPIN}, {SPIN_MAX}
    {l0}:
    v_cmp_ne_u32 vcc, s{sNONCE}, v{A_POLL}
    s_sub_u32 s{sSPIN}, s{sSPIN}, 1
    s_cbranch_vccz {l1}
    s_cbranch_scc1 {l1}
    {reload}
    s_waitcnt vmcnt(0)
    s_branch {l0}
    {l1}:""")


def prologue(g):
    g.e(f"""s_cmp_ge_u32 s2, 256
    s_cbranch_scc1 L_end
    s_load_dwordx2 s[{SRD_X}:{SRD_X+1}], s[0:1], 0
    s_load_dwordx2 s[{SRD_WA}:{SRD_WA+1}], s[0:1], 8
    s_load_dwordx2 s[{SRD_G}:{SRD_G+1}], s[0:1], 48
    s_load_dwordx2 s[{SRD_WB}:{SRD_WB+1}], s[0:1], 32
    s_load_dwordx2 s[{SRD_OA}:{SRD_OA+1}], s[0:1], 16
    s_load_dwordx2 s[{SRD_OB}:{SRD_OB+1}], s[0:1], 40
    s_load_dwordx2 s[{SRD_OUT}:{SRD_OUT+1}], s[0:1], 56
    s_load_dwordx2 s[{SRD_DBG}:{SRD_DBG+1}], s[0:1], 64
    s_load_dwordx2 s[{SRD_WS}:{SRD_WS+1}], s[0:1], 72""")
    if g.opt.get("diag"):
        g.e(f"s_memrealtime s[{sSTAMP}:{sSTAMP+1}]")
    g.e(f"""v_lshrrev_b32 v1, 6, v0
    v_and_b32 v{A_LANE}, 63, v0
    v_readfirstlane_b32 s{sWAVE}, v1""")
    for b, sz in ((SRD_X, 0x200000), (SRD_WA, 0x180000), (SRD_G, 1024), (SRD_WB, 0x180000), (SRD_W2, 0x180000),
                  (SRD_OA, 0x80000), (SRD_OB, 0x80000), (SRD_OUT, 0x200000), (SRD_DBG, 256), (SRD_WS, WS_SIZE)):
        g.e(f"s_mov_b32 s{b+2}, {sz:#x}\ns_mov_b32 s{b+3}, 0x00020000")
    g.e(f"""s_and_b32 s{sT0}, s2, 7
    s_lshr_b32 s{sT1}, s2, 3
    s_and_b32 s{sQUAD}, s{sT0}, 3
    s_lshl_b32 s{sQUAD}, s{sQUAD}, 1
    s_and_b32 s{sT2}, s{sT1}, 1
    s_add_u32 s{sQUAD}, s{sQUAD}, s{sT2}
    s_lshr_b32 s{sRB}, s{sT0}, 2
    s_lshl_b32 s{sRB}, s{sRB}, 4
    s_lshr_b32 s{sT3}, s{sT1}, 1
    s_add_u32 s{sRB}, s{sRB}, s{sT3}
    s_lshl_b32 s{sROT}, s{sT2}, 2
    s_add_u32 s{sROT}, s{sROT}, s{sT3}
    s_and_b32 s{sROT}, s{sROT}, 7
    s_and_b32 s{sHD}, s{sWAVE}, 3
    s_lshr_b32 s{sKH}, s{sWAVE}, 2
    s_mov_b32 s{sRETRY}, 0
    s_cmp_ge_u32 s{sWAVE}, 4
    s_cbranch_scc0 L_compute""")


def x_read_addrs(g, base):
    g.e(f"""v_and_b32 v1, 31, v{A_LANE}
    v_lshrrev_b32 v2, 5, v{A_LANE}
    v_bfe_u32 v3, v{A_LANE}, 1, 3
    v_xor_b32 v2, v2, v3
    v_lshlrev_b32 v1, 7, v1""")
    for s in range(4):
        g.e(f"v_xor_b32 v3, {2*s}, v2\nv_lshl_add_u32 v{base+s}, v3, 4, v1")


def loader(g):
    vW, vX, aXg, vG, vGh, fX, fG, acc = 4, 8, 10, 14, 15, 16, 20, 24
    g.e(f"""v_lshrrev_b32 v1, 3, v{A_LANE}
    v_and_b32 v2, 7, v{A_LANE}
    v_bfe_u32 v3, v{A_LANE}, 4, 1
    v_lshlrev_b32 v3, 2, v3
    v_xor_b32 v3, v3, v2
    v_lshlrev_b32 v3, 4, v3
    v_mul_u32_u24 v{vW}, 3072, v1
    v_add_u32 v{vW}, v{vW}, v3
    v_lshrrev_b32 v3, 4, v{A_LANE}
    v_xor_b32 v3, v3, v2
    v_lshlrev_b32 v{vX}, 10, v1
    v_lshl_add_u32 v{vX}, v3, 4, v{vX}
    v_xor_b32 v3, 4, v3
    v_lshlrev_b32 v{vX+1}, 10, v1
    v_lshl_add_u32 v{vX+1}, v3, 4, v{vX+1}
    v_add_u32 v{vX+1}, 7168, v{vX+1}
    v_add_u32 v{vW+1}, {1*23552}, v{vW}
    v_add_u32 v{vW+2}, {2*23552}, v{vW}
    v_add_u32 v{vW+3}, {3*23552}, v{vW}
    v_lshlrev_b32 v{vG}, 4, v{A_LANE}
    s_lshl_b32 s{sXB}, s{sRB}, 16
    s_lshl_b32 s{sT0}, s{sHD}, 14
    s_add_u32 s{sXB}, s{sXB}, s{sT0}
    s_lshl_b32 s{sT1}, s{sQUAD}, 7
    s_lshr_b32 s{sT0}, s{sHD}, 1
    s_lshl_b32 s{sT0}, s{sT0}, 10
    s_add_u32 s{sWB1}, s{sT1}, s{sT0}
    s_add_u32 s{sWB1}, s{sWB1}, 1024
    s_and_b32 s{sT0}, s{sHD}, 1
    s_mul_i32 s{sT0}, s{sT0}, {32*3072}
    s_add_u32 s{sWB1}, s{sWB1}, s{sT0}
    s_add_u32 s{sT0}, s{sHD}, 1
    s_lshl_b32 s{sT0}, s{sT0}, 10
    s_cmp_ge_u32 s{sHD}, 2
    s_cselect_b32 s{sT0}, 0, s{sT0}
    s_add_u32 s{sWB2}, s{sT1}, s{sT0}
    s_lshl_b32 s{sT4}, s{sHD}, 11
    s_lshl_b32 s{sT5}, s{sHD}, 12
    s_mov_b32 m0, {L_GATE}
    s_waitcnt lgkmcnt(0)""")
    if g.opt.get("diag"):
        g.e(f"s_mov_b32 s{sST0}, s{sSTAMP}")
    g.e(f"""buffer_load_dwordx4 v{vG}, {srd(SRD_G)}, 0 offen lds
    s_cmp_eq_u32 s{sHD}, 2
    s_cselect_b32 s{SRD_W2}, s{SRD_WA}, s{SRD_WB}
    s_cselect_b32 s{SRD_W2+1}, s{SRD_WA+1}, s{SRD_WB+1}""")

    def issue(c):
        slot = c % 5
        if c < 8:
            p = c
            g.e(f"""s_add_u32 s{sT0}, s{sROT}, {p}
            s_and_b32 s{sT0}, s{sT0}, 7
            s_lshl_b32 s{sT1}, s{sT0}, 7
            s_add_u32 s{sT1}, s{sT1}, s{sXB}
            s_add_u32 m0, s{sT4}, {L_X + p*8192}
            s_mul_i32 s{sT2}, s{sT0}, {64*3072}
            buffer_load_dwordx4 v{vX}, {srd(SRD_X)}, s{sT1} offen lds
            buffer_load_dwordx4 v{vX+1}, {srd(SRD_X)}, s{sT1} offen offset:1024 lds
            s_add_u32 m0, s{sT5}, {L_RING + slot*16384}
            s_add_u32 s{sT2}, s{sT2}, s{sWB1}""")
            for k in range(4):
                g.e(f"buffer_load_dwordx4 v{vW+k}, {srd(SRD_WA)}, s{sT2} offen offset:{k*1024} lds")
            return 6
        p, sub = (c - 8) >> 1, (c - 8) & 1
        g.e(f"""s_add_u32 s{sT0}, s{sROT}, {p}
        s_and_b32 s{sT0}, s{sT0}, 7
        s_mul_i32 s{sT2}, s{sT0}, {64*3072}
        s_add_u32 m0, s{sT5}, {L_RING + slot*16384}
        s_add_u32 s{sT2}, s{sT2}, s{sWB2}""")
        if sub:
            g.e(f"s_add_u32 s{sT2}, s{sT2}, {32*3072}")
        for k in range(4):
            g.e(f"buffer_load_dwordx4 v{vW+k}, {srd(SRD_W2)}, s{sT2} offen offset:{k*1024} lds")
        return 4

    n = [issue(c) for c in range(4)]
    g.stamp(1)
    x_read_addrs(g, aXg)
    g.e(f"""s_lshr_b32 s{sT0}, s{sHD}, 1
    s_lshl_b32 s{sT0}, s{sT0}, 15
    s_and_b32 s{sT1}, s{sHD}, 1
    s_lshl_b32 s{sT1}, s{sT1}, 12
    s_add_u32 s{sT0}, s{sT0}, s{sT1}""")
    for s in range(4):
        g.e(f"v_add_u32 v{aXg+s}, s{sT0}, v{aXg+s}")
    g.e(f"""v_lshrrev_b32 v{vGh}, 5, v{A_LANE}
    v_lshlrev_b32 v{vGh}, 4, v{vGh}
    v_add_u32 v{vGh}, {L_GATE}, v{vGh}
    v_mov_b32 v{acc}, 0
    v_and_b32 v1, 31, v{A_LANE}
    v_lshlrev_b32 v{A_PA}, 7, v1
    s_lshl_b32 s{sT3}, s{sQUAD}, 12
    s_add_u32 s{sT3}, s{sT3}, {WS_FKV}
    v_add_u32 v{A_PA}, s{sT3}, v{A_PA}""")
    att_const_setup(g)
    pollc = g.opt.get("pollc", 21)
    poll = f"buffer_load_dword v{A_POLL}, v{A_PA}, {srd(SRD_WS)}, 0 offen sc1"
    for c in range(24):
        out = sum(n[c + 1:])
        if c > pollc:
            out += 1
        g.e(f"s_waitcnt vmcnt({out})\ns_barrier")
        if c == 0:
            g.stamp(2)
        if c == 8:
            g.stamp(3)
        if c + 4 < 24:
            n.append(issue(c + 4))
        if c == pollc:
            g.e(poll)
        if c == 1:
            g.e(f"""v_mov_b32 v1, {L_NONCE}
            ds_read_b32 v1, v1
            s_waitcnt lgkmcnt(0)
            v_readfirstlane_b32 s{sNONCE}, v1""")
        if c >= 8:
            i = c - 8
            pi, s = i >> 2, i & 3
            if s == 0:
                g.e(f"""s_lshr_b32 s{sT0}, s{sHD}, 1
                s_lshl_b32 s{sT0}, s{sT0}, 2
                s_add_u32 s{sT0}, s{sT0}, s{sROT}
                s_add_u32 s{sT0}, s{sT0}, {pi}
                s_and_b32 s{sT0}, s{sT0}, 7
                s_lshl_b32 s{sT0}, s{sT0}, 7
                v_add_u32 v{vG}, s{sT0}, v{vGh}""")
            g.e(f"""ds_read_b128 {vr(fX,4)}, v{aXg+s} offset:{pi*8192}
            ds_read_b128 {vr(fG,4)}, v{vG} offset:{s*32}
            s_waitcnt lgkmcnt(0)""")
            for j in range(4):
                g.e(f"v_dot2_f32_bf16 v{acc}, v{fX+j}, v{fG+j}, v{acc}")
    g.e(f"""s_nop 2
    v_mov_b32 v1, v{acc}
    v_and_b32 v2, 31, v{A_LANE}
    v_lshlrev_b32 v2, 2, v2
    v_permlane32_swap_b32 v{acc}, v1
    s_lshl_b32 s{sT0}, s{sHD}, 7
    s_add_u32 s{sT0}, s{sT0}, {L_GP}
    v_add_f32 v1, v1, v{acc}
    v_add_u32 v2, s{sT0}, v2
    ds_write_b32 v2, v1
    s_waitcnt vmcnt(0)""")
    spin_check(g, poll, "fkv")
    g.stamp(4)
    g.e("s_barrier")
    att_prefetch(g)
    g.e("s_waitcnt lgkmcnt(0)\ns_barrier")
    g.e("s_branch L_attn")


def att_const_setup(g):
    g.e(f"""v_lshlrev_b32 v{A_VK}, 4, v{A_LANE}
    v_lshrrev_b32 v1, 5, v{A_LANE}
    v_and_b32 v2, 15, v{A_LANE}
    v_lshlrev_b32 v1, 8, v1
    v_lshl_add_u32 v1, v2, 4, v1
    v_add_u32 v{A_VV}, 1024, v1
    v_mov_b32 v{A_IDX}, 0xdddd
    s_mov_b32 s{sVMASK}, 0xffff
    s_mov_b32 s{sVMASK+1}, 0xffff
    s_mov_b32 s{sHMASK}, 0xffff0000
    s_mov_b32 s{sHMASK+1}, 0xffff0000
    s_lshl_b32 s{sT0}, s{sQUAD}, 2
    s_add_u32 s{sT0}, s{sT0}, s{sHD}
    s_mul_i32 s{sKVB}, s{sT0}, {HEAD_STRIDE}
    s_lshl_b32 s{sT1}, s{sKH}, 16
    s_add_u32 s{sKVB}, s{sKVB}, s{sT1}
    s_lshl_b32 s{sTILE}, s{sRB}, 1
    s_add_u32 s{sTILE}, s{sTILE}, s{sKH}""")
    if WS_KV:
        g.e(f"s_add_u32 s{sKVB}, s{sKVB}, {WS_KV}")
    krot = g.opt.get("krot", 1)
    if krot:
        g.e(f"s_lshl_b32 s{sKROT}, s{sRB}, 12\ns_and_b32 s{sKROT}, s{sKROT}, 0xffff")
    else:
        g.e(f"s_mov_b32 s{sKROT}, 0")
    g.e(f"""v_and_b32 v1, 27, v{A_LANE}
    v_cmp_eq_u32 vcc, 16, v1
    v_mov_b32 v2, 0
    v_mov_b32 v3, 0x3f803f80
    v_cndmask_b32 v1, v2, v3, vcc""")
    for i in range(32):
        g.e(f"v_mov_b32 v{A_V0+i}, v1")
    g.e(f"""v_lshrrev_b32 v1, 3, v{A_LANE}
    v_and_b32 v2, 7, v{A_LANE}
    v_bfe_u32 v3, v{A_LANE}, 4, 1
    v_lshlrev_b32 v3, 2, v3
    v_xor_b32 v3, v3, v2
    v_lshlrev_b32 v3, 4, v3
    v_lshl_add_u32 v{A_VO}, v1, 10, v3
    v_add_u32 v{A_VO+1}, {1*7168}, v{A_VO}
    v_add_u32 v{A_VO+2}, {2*7168}, v{A_VO}
    v_add_u32 v{A_VO+3}, {3*7168}, v{A_VO}""")


def kv_group(g, kt, v0t, v1t):
    if v1t is not None:
        g.e(f"""s_mov_b64 exec, s[{sVMASK}:{sVMASK+1}]
        buffer_load_dwordx4 {vr(A_V1+4*(v1t%4),4)}, v{A_VV}, {srd(SRD_WS)}, s{sKVS} offen offset:512 sc1
        s_add_u32 s{sKVO}, s{sKVO}, 2048
        s_and_b32 s{sKVO}, s{sKVO}, 0xffff
        s_add_u32 s{sKVS}, s{sKVO}, s{sKVB}""")
    else:
        g.e(f"s_mov_b64 exec, s[{sVMASK}:{sVMASK+1}]")
    g.e(f"""buffer_load_dwordx4 {vr(A_V0+4*(v0t%4),4)}, v{A_VV}, {srd(SRD_WS)}, s{sKVS} offen sc1
    s_mov_b64 exec, -1
    buffer_load_dwordx4 {vr(A_K+4*(kt%4),4)}, v{A_VK}, {srd(SRD_WS)}, s{sKVS} offen sc1""")


def att_prefetch(g):
    g.e(f"s_mov_b32 s{sKVO}, s{sKROT}\ns_add_u32 s{sKVS}, s{sKVO}, s{sKVB}")
    kv_group(g, 0, 0, None)
    for t in range(1, 4):
        kv_group(g, t, t, t - 1)


def phi_block(g, src, n):
    T = 160
    for b in range(0, n, 8):
        for j in range(8):
            g.e(f"v_fma_f32 v{T+j}, v{src+b+j}, s{sC1}, v{T+8}")
        for j in range(8):
            g.e(f"v_exp_f32_e64 v{T+j}, v{T+j} clamp")
        for j in range(8):
            g.e(f"v_max_f32 v{src+b+j}, s{sC3}, v{src+b+j}")
        for j in range(8):
            g.e(f"v_add_f32 v{src+b+j}, v{T+j}, v{src+b+j}")


def cvt_block(g, dst, src, n):
    for j in range(n // 2):
        g.e(f"v_cvt_pk_bf16_f32 v{dst+j}, v{src+2*j}, v{src+2*j+1}")


def compute(g, var):
    aX, aW0, aW1, vST = 4, 8, 9, 10
    SET = (16, 32)
    ACC1, ACC2 = 64, 96

    def wa(slot):
        return (aW1, 0) if slot == 4 else (aW0, slot * 16384)

    def reads(c, s, st):
        slot = c % 5
        reg, off = wa(slot)
        b = SET[st]
        if c < 8:
            p, xs = c, s
            woffs = [var * 8192 + s * 2048]
        else:
            p, xs = (c - 8) >> 1, ((c - 8) & 1) * 2 + s
            woffs = [(2 * var) * 4096 + s * 2048, (2 * var + 1) * 4096 + s * 2048]
        g.e(f"ds_read_b128 {vr(b,4)}, v{aX+xs} offset:{L_X + p*8192}")
        for i, wo in enumerate(woffs):
            g.e(f"ds_read_b64_tr_b16 {vr(b+8+4*i,2)}, v{reg} offset:{off+wo}")
            g.e(f"ds_read_b64_tr_b16 {vr(b+10+4*i,2)}, v{reg} offset:{off+wo+512}")
            if i == 0:
                g.e(f"ds_read_b128 {vr(b+4,4)}, v{aX+xs} offset:{L_X + p*8192 + 4096}")
        return 2 + 2 * len(woffs)

    def mfmas(c, st):
        b = SET[st]
        ct_orient = (var == 0) if c < 8 else (var == 1)
        nty = 1 if c < 8 else 2
        for ty in range(nty):
            for tt in range(2):
                acc = (ACC1 + 16 * tt) if c < 8 else (ACC2 + 32 * ty + 16 * tt)
                X, W = vr(b + 4 * tt, 4), vr(b + 8 + 4 * ty, 4)
                A, B = (W, X) if ct_orient else (X, W)
                g.e(f"v_mfma_f32_32x32x16_bf16 {vr(acc,16)}, {A}, {B}, {vr(acc,16)}")

    x_read_addrs(g, aX)
    g.e(f"""v_bfe_u32 v1, v{A_LANE}, 2, 2
    v_lshrrev_b32 v2, 5, v{A_LANE}
    v_lshl_add_u32 v1, v2, 3, v1
    v_lshlrev_b32 v{aW0}, 7, v1
    v_bfe_u32 v1, v{A_LANE}, 3, 1
    s_and_b32 s{sT0}, s{sWAVE}, 1
    v_xor_b32 v1, s{sT0}, v1
    v_bfe_u32 v2, v{A_LANE}, 4, 1
    v_lshl_add_u32 v1, v1, 1, v2
    v_lshlrev_b32 v1, 5, v1
    v_and_b32 v2, 3, v{A_LANE}
    v_lshl_add_u32 v1, v2, 3, v1
    v_add_u32 v{aW0}, v{aW0}, v1
    v_add_u32 v{aW0}, {L_RING}, v{aW0}
    v_add_u32 v{aW1}, 65536, v{aW0}""")
    if var == 0:
        g.e(f"""v_and_b32 v1, 0x33, v{A_LANE}
        v_bfe_u32 v2, v{A_LANE}, 2, 1
        v_lshl_or_b32 v1, v2, 3, v1
        v_bfe_u32 v2, v{A_LANE}, 3, 1
        v_lshl_or_b32 v1, v2, 2, v1
        v_lshlrev_b32 v{vST}, 4, v1""")
    else:
        g.e(f"""v_bfe_u32 v1, v{A_LANE}, 4, 1
        v_mul_u32_u24 v1, {HEAD_STRIDE}, v1
        v_lshrrev_b32 v2, 5, v{A_LANE}
        v_lshl_add_u32 v1, v2, 8, v1
        v_and_b32 v2, 15, v{A_LANE}
        v_lshl_add_u32 v1, v2, 4, v1
        v_add_u32 v{vST}, 1024, v1""")
    for i in range(32):
        g.e(f"v_mov_b32 v{ACC1+i}, 0")
    phi_ty = 0 if var == 0 else 1
    for ty in range(2):
        for i in range(32):
            g.e(f"v_mov_b32 v{ACC2+32*ty+i}, {f32(1e-6) if ty == phi_ty else 0}")
    g.e(f"""s_mov_b32 s{sC1}, {f32(LOG2E)}
    s_mov_b32 s{sC3}, {f32(1e-6)}
    v_mov_b32 v168, {f32(-1e-6*LOG2E)}""")
    att_const_setup(g)
    g.e("s_waitcnt lgkmcnt(0)")
    if g.opt.get("diag"):
        g.e(f"s_mov_b32 s{sST0}, s{sSTAMP}")
    if var == 0:
        l_skip, l_now, l_poll, l_got = g.label("nn"), g.label("nw"), g.label("np"), g.label("ng")
        g.e(f"""s_cmp_eq_u32 s{sWAVE}, 0
        s_cbranch_scc0 {l_skip}
        v_mov_b32 v2, 0
        s_cmp_eq_u32 s2, 0
        s_cbranch_scc0 {l_now}
        s_memrealtime s[{sSTAMP+2}:{sSTAMP+3}]
        s_waitcnt lgkmcnt(0)
        s_or_b32 s{sSTAMP+2}, s{sSTAMP+2}, 1
        v_mov_b32 v1, s{sSTAMP+2}
        buffer_store_dword v1, v2, {srd(SRD_DBG)}, 0 offen sc1
        {l_now}:
        s_mov_b32 s{sSPIN}, {SPIN_MAX}
        {l_poll}:
        buffer_load_dword v1, v2, {srd(SRD_DBG)}, 0 offen sc1
        s_waitcnt vmcnt(0)
        v_readfirstlane_b32 s{sNONCE}, v1
        s_sub_u32 s{sSPIN}, s{sSPIN}, 1
        s_cbranch_scc1 {l_got}
        s_cmp_eq_u32 s{sNONCE}, 0
        s_cbranch_scc1 {l_poll}
        {l_got}:
        v_mov_b32 v3, {L_NONCE}
        ds_write_b32 v3, v1
        ds_write_b32 v3, v2 offset:4
        s_waitcnt lgkmcnt(0)
        {l_skip}:""")
    prefetch_touch(g, var)
    g.stamp(1)

    flagc = g.opt.get("flagc", 14)
    st = 0
    pend = None
    for c in range(24):
        ns = 4 if c < 8 else 2
        if c == flagc:
            g.e("s_waitcnt vmcnt(0)")
        g.e("s_barrier")
        if c == 0:
            g.stamp(2)
        if c == flagc and var == 0:
            l = g.label("kf")
            g.e(f"""s_cmp_eq_u32 s{sWAVE}, 0
            s_cbranch_scc0 {l}
            s_lshl_b32 s{sT0}, s{sQUAD}, 5
            s_add_u32 s{sT0}, s{sT0}, s{sRB}
            s_lshl_b32 s{sT0}, s{sT0}, 7
            s_add_u32 s{sT0}, s{sT0}, {WS_FKV}
            v_mov_b32 v1, s{sNONCE}
            v_mov_b32 v2, 0
            s_mov_b64 exec, 1
            buffer_store_dword v1, v2, {srd(SRD_WS)}, s{sT0} offen sc1
            s_mov_b64 exec, -1
            {l}:""")
        for s in range(ns):
            nrd = reads(c, s, st)
            if pend is not None:
                if s > 0:
                    g.e(f"s_waitcnt lgkmcnt({nrd})")
                mfmas(*pend)
                if pend[0] == 7 and c == 8:
                    epilogue_a(g, var, ACC1, vST)
            pend = (c, st)
            st ^= 1
        g.e("s_waitcnt lgkmcnt(0)")
    mfmas(*pend)
    g.stamp(4)
    g.e("s_barrier")
    if var == 1 or True:
        l = g.label("rn")
        g.e(f"""v_mov_b32 v1, {L_NONCE}
        ds_read_b32 v1, v1""")
    att_prefetch(g)
    g.e(f"s_waitcnt lgkmcnt(0)\nv_readfirstlane_b32 s{sNONCE}, v1")
    epilogue_b(g, var, ACC2)
    g.e("s_waitcnt lgkmcnt(0)\ns_barrier")
    if var == 0:
        g.e("s_branch L_attn")


def prefetch_touch(g, var):
    if not g.opt.get("touch", 1):
        return
    l = g.label("pt")
    if var == 0:
        g.e(f"""s_cmp_eq_u32 s{sWAVE}, 1
        s_cbranch_scc0 {l}
        s_getpc_b64 s[{sSTAMP+2}:{sSTAMP+3}]
        L_pc:
        s_sub_u32 s{sSTAMP+2}, s{sSTAMP+2}, L_pc-{KNAME}
        s_subb_u32 s{sSTAMP+3}, s{sSTAMP+3}, 0
        s_lshr_b32 s{sT0}, s2, 3
        s_and_b32 s{sT0}, s{sT0}, 7
        s_lshl_b32 s{sT0}, s{sT0}, 13
        v_lshl_add_u32 v1, v{A_LANE}, 7, s{sT0}
        v_min_u32 v1, L_codeend-{KNAME}-4, v1
        global_load_dword v11, v1, s[{sSTAMP+2}:{sSTAMP+3}]
        {l}:""")
    else:
        l3 = g.label("pt3")
        g.e(f"""s_and_b32 s{sT0}, s{sRB}, 15
        s_lshl_b32 s{sT0}, s{sT0}, 5
        v_and_b32 v1, 31, v{A_LANE}
        v_add_u32 v1, s{sT0}, v1
        v_lshrrev_b32 v2, 5, v{A_LANE}
        s_lshl_b32 s{sT1}, s{sQUAD}, 7
        s_cmp_eq_u32 s{sWAVE}, 2
        s_cbranch_scc0 {l3}
        v_mul_u32_u24 v1, 3072, v1
        v_lshl_add_u32 v2, v2, 10, v1
        buffer_load_dword v11, v2, {srd(SRD_WB)}, s{sT1} offen
        buffer_load_dword v11, v1, {srd(SRD_WB)}, s{sT1} offen offset:2048
        buffer_load_dword v11, v1, {srd(SRD_WA)}, s{sT1} offen
        s_branch {l}
        {l3}:
        v_lshlrev_b32 v1, 10, v1
        buffer_load_dword v11, v1, {srd(SRD_OA)}, s{sT1} offen
        buffer_load_dword v11, v1, {srd(SRD_OB)}, s{sT1} offen
        {l}:""")


def epilogue_a(g, var, ACC1, vST):
    T = 160
    g.e(f"""s_lshl_b32 s{sT0}, s{sQUAD}, 2
    s_and_b32 s{sT1}, s{sWAVE}, 1
    s_lshl_b32 s{sT1}, s{sT1}, 1
    s_add_u32 s{sT0}, s{sT0}, s{sT1}
    s_mul_i32 s{sT0}, s{sT0}, {HEAD_STRIDE}
    s_lshl_b32 s{sT1}, s{sRB}, 12
    s_add_u32 s{sT0}, s{sT0}, s{sT1}
    s_add_u32 s{sT0}, s{sT0}, {WS_KV}
    s_add_u32 s{sT1}, s{sT0}, {HEAD_STRIDE}
    s_nop 4""")
    for tt in range(2):
        if tt == 1:
            pass
        cvt_block(g, T + 8 * tt + 16, ACC1 + 16 * tt, 16)
        for hlf in range(2):
            d = vr(T + 8 * tt + 16 + 4 * hlf, 4)
            if var == 0:
                g.e(f"buffer_store_dwordx4 {d}, v{vST}, {srd(SRD_WS)}, s{sT0+hlf} offen offset:{tt*2048} sc1")
            else:
                g.e(f"buffer_store_dwordx4 {d}, v{vST}, {srd(SRD_WS)}, s{sT0} offen offset:{tt*2048+hlf*512} sc1")
    g.stamp(3)


def epilogue_b(g, var, ACC2):
    if var == 1:
        g.e(f"""s_mov_b32 s{sC2}, {f32(0.25*LOG2E)}
        s_and_b32 s{sT0}, s{sWAVE}, 1
        s_lshl_b32 s{sT0}, s{sT0}, 12
        s_add_u32 s{sT0}, s{sT0}, {L_STASH}
        v_add_u32 v2, s{sT0}, v{A_VK}""")
        for i in range(32):
            g.e(f"v_mul_f32 v{ACC2+i}, s{sC2}, v{ACC2+i}")
        for ty in range(2):
            if ty == 1:
                phi_block(g, ACC2 + 32, 32)
            for tt in range(2):
                d = 16 + 16 * ty + 8 * tt
                cvt_block(g, d, ACC2 + 32 * ty + 16 * tt, 16)
                for i in range(2):
                    g.e(f"ds_write_b128 v2, {vr(d+4*i,4)} offset:{ty*8192 + (i*2+tt)*1024}")
    else:
        PK, VF, ONE, D, Z = 16, 32, 48, 64, 80
        cvt_block(g, VF, ACC2 + 32, 32)
        for i in range(4):
            g.e(f"v_mov_b32 v{ONE+i}, 0x3f803f80")
        for tt in range(2):
            phi_block(g, ACC2 + 16 * tt, 16)
            cvt_block(g, PK + 8 * tt, ACC2 + 16 * tt, 16)
            g.e("s_nop 1")
            for blk in range(2):
                k = 2 * tt + blk
                cD = "0" if k == 0 else vr(D, 16)
                cZ = "0" if k == 0 else vr(Z, 16)
                g.e(f"v_mfma_f32_32x32x16_bf16 {vr(D,16)}, {vr(PK+4*k,4)}, {vr(VF+4*k,4)}, {cD}")
                g.e(f"v_mfma_f32_32x32x16_bf16 {vr(Z,16)}, {vr(PK+4*k,4)}, {vr(ONE,4)}, {cZ}")
        g.e(f"""s_lshl_b32 s{sT0}, s{sQUAD}, 2
        s_and_b32 s{sT1}, s{sWAVE}, 1
        s_lshl_b32 s{sT1}, s{sT1}, 1
        s_add_u32 s{sT0}, s{sT0}, s{sT1}
        s_lshl_b32 s{sT0}, s{sT0}, 5
        s_add_u32 s{sT0}, s{sT0}, s{sRB}
        s_lshl_b32 s{sT0}, s{sT0}, 10
        s_add_u32 s{sT0}, s{sT0}, {WS_P}
        s_add_u32 s{sT1}, s{sT0}, 32768
        v_xor_b32 v2, 256, v{A_VK}
        s_nop 3""")
        cvt_block(g, 96, D, 16)
        cvt_block(g, 104, Z, 16)
        for j in range(4):
            g.e(f"v_cndmask_b32 v{112+j}, v{96+j}, v{104+j}, s[{sHMASK}:{sHMASK+1}]")
        for j in range(4):
            g.e(f"v_cndmask_b32 v{116+j}, v{108+j}, v{100+j}, s[{sHMASK}:{sHMASK+1}]")
        g.e(f"""buffer_store_dwordx4 {vr(112,4)}, v{A_VK}, {srd(SRD_WS)}, s{sT0} offen sc1
        buffer_store_dwordx4 {vr(116,4)}, v2, {srd(SRD_WS)}, s{sT1} offen sc1""")


def att_step(g, t):
    p, q, r = t % 4, (t + 1) % 4, (t - 1) % 4
    SA, SB = A_SA, A_SB

    def ex(b, i0, i1):
        for i in range(i0, i1):
            g.e(f"v_exp_f32 v{b+i}, v{b+i}")

    def sm(o, v, s):
        g.e(f"v_smfmac_f32_32x32x32_bf16 {vr(o,16)}, {vr(v,4)}, {vr(s,8)}, v{A_IDX}")

    g.e("s_setprio 1")
    ex(SA, 0, 1)
    g.e("s_setprio 2")
    ex(SA, 1, 2)
    sm(A_OB, A_V1 + 4 * r, SB + 8)
    ex(SA, 2, 5)
    g.e(f"v_mfma_f32_32x32x16_bf16 {vr(SB,16)}, {vr(A_K+4*p,4)}, {vr(A_Q+4,4)}, {vr(A_CB,16)}")
    ex(SA, 5, 10)
    sm(A_OA, A_V0 + 4 * p, SA)
    ex(SA, 10, 16)
    ex(SB, 0, 2)
    sm(A_OA, A_V1 + 4 * p, SA + 8)
    ex(SB, 2, 5)
    g.e(f"v_mfma_f32_32x32x16_bf16 {vr(SA,16)}, {vr(A_K+4*q,4)}, {vr(A_Q,4)}, {vr(A_CA,16)}")
    ex(SB, 5, 10)
    sm(A_OB, A_V0 + 4 * p, SB)
    ex(SB, 10, 16)
    g.e("s_setprio 0")


def wo_dma(g, part):
    m, half = part >> 1, part & 1
    base = L_WOA if m else L_WOB
    g.e(f"""s_lshl_b32 s{sT0}, s{sWAVE}, 3
    s_add_u32 s{sT0}, s{sT0}, {4*half}
    s_lshl_b32 s{sT1}, s{sT0}, 10
    s_add_u32 m0, s{sT1}, {base}
    s_lshl_b32 s{sT0}, s{sT0}, 13
    s_lshl_b32 s{sT1}, s{sQUAD}, 7
    s_add_u32 s{sT0}, s{sT0}, s{sT1}""")
    for k in range(4):
        g.e(f"buffer_load_dwordx4 v{A_VO+k}, {srd(SRD_OA if m else SRD_OB)}, s{sT0} offen offset:{k*1024} lds")


def o_store_addr(g, base, dst):
    g.e(f"""s_and_b32 s{sT0}, s{sTILE}, 7
    s_xor_b32 s{sT0}, s{sT0}, s{sQUAD}
    s_lshl_b32 s{sT0}, s{sT0}, 2
    s_add_u32 s{sT0}, s{sT0}, s{sHD}
    s_lshl_b32 s{sT0}, s{sT0}, 10
    s_lshl_b32 s{dst}, s{sTILE}, 15
    s_add_u32 s{dst}, s{dst}, s{sT0}
    s_add_u32 s{dst}, s{dst}, {base}""")


def o_flag_store(g, base):
    g.e(f"""s_lshl_b32 s{sT0}, s{sTILE}, 3
    s_add_u32 s{sT0}, s{sT0}, s{sQUAD}
    s_lshl_b32 s{sT0}, s{sT0}, 7
    s_lshl_b32 s{sT1}, s{sHD}, 2
    s_add_u32 s{sT0}, s{sT0}, s{sT1}
    s_add_u32 s{sT0}, s{sT0}, {base}
    v_mov_b32 v{A_T}, s{sNONCE}
    v_mov_b32 v{A_T+1}, 0
    s_mov_b64 exec, 1
    buffer_store_dword v{A_T}, v{A_T+1}, {srd(SRD_WS)}, s{sT0} offen sc1
    s_mov_b64 exec, -1""")


def o_poll_addr(g):
    g.e(f"""v_min_u32 v{A_T}, 7, v{A_LANE}
    v_lshrrev_b32 v{A_T+1}, 2, v{A_T}
    v_and_b32 v{A_T}, 3, v{A_T}
    v_lshlrev_b32 v{A_T}, 2, v{A_T}
    v_lshl_add_u32 v{A_PA}, v{A_T+1}, 7, v{A_T}
    s_lshl_b32 s{sT0}, s{sTILE}, 3
    s_lshl_b32 s{sT1}, s{sHD}, 1
    s_add_u32 s{sT0}, s{sT0}, s{sT1}
    s_lshl_b32 s{sT0}, s{sT0}, 7
    v_add_u32 v{A_PA}, s{sT0}, v{A_PA}""")


def o_frag_loads(g, base, dst):
    for u in range(2):
        g.e(f"""s_lshl_b32 s{sT0}, s{sHD}, 1
        s_add_u32 s{sT0}, s{sT0}, {u}
        s_and_b32 s{sT1}, s{sTILE}, 7
        s_xor_b32 s{sT0}, s{sT0}, s{sT1}
        s_lshl_b32 s{sT0}, s{sT0}, 12
        s_lshl_b32 s{sT1}, s{sTILE}, 15
        s_add_u32 s{sT0}, s{sT0}, s{sT1}
        s_add_u32 s{sT0}, s{sT0}, {base}""")
        for i in range(4):
            g.e(f"buffer_load_dwordx4 {vr(dst+16*u+4*i,4)}, v{A_VK}, {srd(SRD_WS)}, s{sT0} offen offset:{i*1024} sc1")


def hook(g, slot):
    b = g
    fp_poll = f"buffer_load_dword v{A_POLL}, v{A_PA}, {srd(SRD_WS)}, 0 offen sc1"
    fob_poll = f"buffer_load_dword v{A_POLL}, v{A_PA}, {srd(SRD_WS)}, s{sT5} offen sc1"

    def batch(n):
        b.e(f"""s_lshl_b32 s{sT0}, s{sQUAD}, 2
        s_add_u32 s{sT0}, s{sT0}, s{sHD}
        s_lshl_b32 s{sT0}, s{sT0}, 15
        s_add_u32 s{sT0}, s{sT0}, {WS_P + n*16384}""")
        for i in range(16):
            if i and i % 4 == 0:
                b.e(f"s_add_u32 s{sT0}, s{sT0}, 4096")
            b.e(f"buffer_load_dwordx4 {vr(A_BATCH+4*i,4)}, v{A_VK}, {srd(SRD_WS)}, s{sT0} offen offset:{(i%4)*1024} sc1")

    def bm(n):
        for i in range(16):
            c = "0" if (n == 0 and i == 0) else vr(A_DN, 16)
            b.e(f"v_mfma_f32_32x32x16_bf16 {vr(A_DN,16)}, {vr(A_BATCH+4*i,4)}, {vr(A_PQ,4)}, {c}")

    if slot <= 3:
        wo_dma(b, slot)
        g.vm_issue("wo", 4)
    if slot == 1:
        g.vm_wait("pstore")
        g.vm_issue("fp", 1, True)
        l = b.label("fp")
        b.e(f"""s_cmp_lt_u32 s{sWAVE}, 2
        s_cbranch_scc0 {l}
        s_lshl_b32 s{sT0}, s{sQUAD}, 1
        s_add_u32 s{sT0}, s{sT0}, s{sWAVE}
        s_lshl_b32 s{sT0}, s{sT0}, 5
        s_add_u32 s{sT0}, s{sT0}, s{sRB}
        s_lshl_b32 s{sT0}, s{sT0}, 7
        s_add_u32 s{sT0}, s{sT0}, {WS_FP}
        v_mov_b32 v{A_T}, s{sNONCE}
        v_mov_b32 v{A_T+1}, 0
        s_mov_b64 exec, 1
        buffer_store_dword v{A_T}, v{A_T+1}, {srd(SRD_WS)}, s{sT0} offen sc1
        s_mov_b64 exec, -1
        {l}:""")
    if slot == 3:
        b.e(f"""s_lshl_b32 s{sT0}, s{sQUAD}, 1
        s_lshr_b32 s{sT1}, s{sHD}, 1
        s_add_u32 s{sT0}, s{sT0}, s{sT1}
        s_lshl_b32 s{sT0}, s{sT0}, 12
        s_add_u32 s{sT0}, s{sT0}, {WS_FP}
        v_and_b32 v{A_PA}, 31, v{A_LANE}
        v_lshlrev_b32 v{A_PA}, 7, v{A_PA}
        v_add_u32 v{A_PA}, s{sT0}, v{A_PA}
        {fp_poll}""")
        g.vm_issue("fppoll")
    if slot == 4:
        g.vm_wait("fppoll")
        spin_check(b, fp_poll, "fpw")
        batch(0)
        g.vm_issue("b0", 16)
    if slot == 5:
        g.vm_wait("b0")
        bm(0)
        batch(1)
        g.vm_issue("b1", 16)
    if slot == 6:
        g.vm_wait("b1")
        bm(1)
        o_store_addr(b, WS_OB, sT2)
        b.e(f"""s_mov_b32 s{sT1}, {f32(1e-6)}
        s_nop 2
        v_add_f32 v{A_T}, s{sT1}, v{A_DN+8}
        v_rcp_f32 v{A_T}, v{A_T}
        s_nop 0
        v_mul_f32 v{A_T}, v{A_G1}, v{A_T}""")
        for j in range(8):
            b.e(f"v_mul_f32 v{A_DN+j}, v{A_T}, v{A_DN+j}")
        cvt_block(b, A_T, A_DN, 8)
        b.e(f"buffer_store_dwordx4 {vr(A_T,4)}, v{A_VK}, {srd(SRD_WS)}, s{sT2} offen sc1")
        g.vm_issue("obst")
    if slot == 7:
        g.vm_wait("obst")
        o_flag_store(b, WS_FOB)
        g.vm_issue("fob")
    if slot == 10:
        o_poll_addr(b)
        b.e(f"s_mov_b32 s{sT5}, {WS_FOB}\n{fob_poll}")
        g.vm_issue("fobpoll")
    if slot == 11:
        g.vm_wait("fobpoll")
        spin_check(b, fob_poll, "fob")
        o_frag_loads(b, WS_OB, A_OBF)
        g.vm_issue("obf", 8)


def outproj_part(g, frags, wbase_reg, first):
    def rd(i, st):
        for a in range(2):
            for u in range(2):
                g.e(f"ds_read_b64_tr_b16 {vr(A_WF+8*st+4*a+2*u,2)}, v{wbase_reg+a} offset:{i*2048+u*1024}")
    rd(0, 0)
    for i in range(8):
        if i < 7:
            rd(i + 1, (i + 1) & 1)
            g.e("s_waitcnt lgkmcnt(4)")
        else:
            g.e("s_waitcnt lgkmcnt(0)")
        if not first:
            g.e(f"s_waitcnt vmcnt({7-i})")
        for a in range(2):
            acc = vr(A_ACC + 16 * a, 16)
            c = "0" if (first and i == 0) else acc
            g.e(f"v_mfma_f32_32x32x16_bf16 {acc}, {vr(A_WF+8*(i&1)+4*a,4)}, {vr(frags+4*i,4)}, {c}")


def att_start(g):
    for i in range(32):
        g.e(f"v_mov_b32 v{A_OA+i}, 0")
    for i in range(8):
        g.e(f"v_mov_b32 v{A_SB+8+i}, 0")
    g.e(f"""s_waitcnt vmcnt(6)
    v_mfma_f32_32x32x16_bf16 {vr(A_SA,16)}, {vr(A_K,4)}, {vr(A_Q,4)}, {vr(A_CA,16)}
    s_nop 11""")


def attention(g):
    g.e("L_attn:")
    g.stamp(5)
    g.e(f"""s_lshl_b32 s{sT0}, s{sHD}, 11
    s_lshl_b32 s{sT1}, s{sKH}, 10
    s_add_u32 s{sT2}, s{sT0}, s{sT1}
    s_add_u32 s{sT2}, s{sT2}, {L_STASH}
    s_xor_b32 s{sT3}, s{sT2}, 1024
    v_add_u32 v1, s{sT2}, v{A_VK}
    v_add_u32 v2, s{sT3}, v{A_VK}
    ds_read_b128 {vr(A_Q,4)}, v1
    ds_read_b128 {vr(A_Q+4,4)}, v2
    ds_read_b128 {vr(A_PQ,4)}, v1 offset:8192
    v_and_b32 v3, 31, v{A_LANE}
    v_lshlrev_b32 v3, 2, v3
    s_lshl_b32 s{sT0}, s{sKH}, 7
    s_add_u32 s{sT0}, s{sT0}, {L_GP}
    v_add_u32 v3, s{sT0}, v3
    ds_read_b32 v{A_G}, v3
    ds_read_b32 v{A_G1}, v3 offset:256""")
    for i in range(32):
        g.e(f"v_mov_b32 v{A_CA+i}, 0")
    g.e(f"""s_waitcnt lgkmcnt(0)
    v_add_f32 v{A_G}, v{A_G}, v{A_G1}
    v_mul_f32 v{A_G}, {f32(-LOG2E)}, v{A_G}
    v_exp_f32 v{A_G}, v{A_G}
    s_nop 0
    v_add_f32 v{A_G}, 1.0, v{A_G}
    v_rcp_f32 v{A_G}, v{A_G}
    s_nop 0
    v_sub_f32 v{A_G1}, 1.0, v{A_G}""")
    att_start(g)
    g.stamp(6)
    g.vm_reset()
    g.vm_issue(-4, 2)
    for u in (-3, -2, -1):
        g.vm_issue(u, 3)
    g.vm_issue("pstore", 2, True)
    for t in range(32):
        att_step(g, t)
        if t < 31:
            if t < 29:
                kv_group(g, t + 4, t + 4, t + 3)
                g.vm_issue(t, 3)
            if t & 1:
                hook(g, t >> 1)
            g.vm_wait(t - 2)
    g.vm_wait("wo", "obf")
    g.e(f"""L_attn_done:
    s_nop 1
    v_smfmac_f32_32x32x32_bf16 {vr(A_OB,16)}, {vr(A_V1+12,4)}, {vr(A_SB+8,8)}, v{A_IDX}""")
    g.stamp(7)
    l_ok = g.label("ok")
    g.e(f"""s_xor_b32 s{sT0}, s{sWAVE}, 4
    s_lshl_b32 s{sT1}, s{sT0}, 11
    s_add_u32 s{sT1}, s{sT1}, {L_STASH}
    v_add_u32 v1, s{sT1}, v{A_VK}
    s_lshl_b32 s{sT1}, s{sT0}, 8
    s_add_u32 s{sT1}, s{sT1}, {L_LX}
    v_lshl_add_u32 v2, v{A_LANE}, 2, s{sT1}
    s_mov_b32 s{sT2}, {f32(2.0**30)}
    s_mov_b32 s{sT3}, {f32(2.0**-30)}
    s_lshl_b32 s{sT1}, s{sWAVE}, 11
    s_add_u32 s{sT1}, s{sT1}, {L_STASH}
    v_add_u32 v3, s{sT1}, v{A_VK}
    s_nop 1
    ds_write_b128 v1, {vr(A_OB,4)}
    ds_write_b128 v1, {vr(A_OB+4,4)} offset:1024
    ds_write_b32 v2, v{A_OB+8}
    v_max_f32 v{A_T}, v{A_OA+8}, v{A_OB+8}
    v_min_f32 v{A_T+1}, v{A_OA+8}, v{A_OB+8}
    v_add_f32 v{A_T+2}, v{A_OA+8}, v{A_OB+8}
    v_cmp_nle_f32 vcc, v{A_T+2}, s{sT2}
    v_cmp_nge_f32 s[{sSTAMP+2}:{sSTAMP+3}], v{A_T+1}, s{sT3}
    s_or_b64 vcc, vcc, s[{sSTAMP+2}:{sSTAMP+3}]
    s_cbranch_vccz {l_ok}
    v_mov_b32 v{A_T}, {L_BAD}
    v_mov_b32 v{A_T+1}, 1
    ds_write_b32 v{A_T}, v{A_T+1}
    {l_ok}:
    s_lshl_b32 s{sT1}, s{sWAVE}, 8
    s_add_u32 s{sT1}, s{sT1}, {L_LX}
    v_lshl_add_u32 v2, v{A_LANE}, 2, s{sT1}
    v_mov_b32 v{A_T+3}, {L_BAD}
    s_waitcnt lgkmcnt(0)
    s_barrier
    ds_read_b32 v{A_T+3}, v{A_T+3}
    ds_read_b32 v{A_T}, v2
    ds_read_b128 {vr(A_SA,4)}, v3
    ds_read_b128 {vr(A_SA+4,4)}, v3 offset:1024""")
    o_store_addr(g, WS_OA, sT2)
    g.e(f"""s_waitcnt lgkmcnt(2)
    v_readfirstlane_b32 s{sT3}, v{A_T+3}
    v_add_f32 v{A_T}, v{A_T}, v{A_OA+8}
    v_rcp_f32 v{A_T}, v{A_T}
    s_cmp_gt_u32 s{sT3}, s{sRETRY}
    s_cbranch_scc1 L_fallback
    v_mul_f32 v{A_T}, v{A_G}, v{A_T}
    s_waitcnt lgkmcnt(0)""")
    for j in range(8):
        g.e(f"v_add_f32 v{A_SA+j}, v{A_SA+j}, v{A_OA+j}")
    for j in range(8):
        g.e(f"v_mul_f32 v{A_SA+j}, v{A_T}, v{A_SA+j}")
    cvt_block(g, A_SB, A_SA, 8)
    g.e(f"buffer_store_dwordx4 {vr(A_SB,4)}, v{A_VK}, {srd(SRD_WS)}, s{sT2} offen sc1")
    g.stamp(8)
    WB, WA = A_Q, A_Q + 2
    g.e(f"""v_bfe_u32 v1, v{A_LANE}, 2, 2
    v_lshrrev_b32 v2, 5, v{A_LANE}
    v_lshl_add_u32 v1, v2, 2, v1
    v_lshlrev_b32 v{WB}, 7, v1
    v_bfe_u32 v1, v{A_LANE}, 3, 1
    s_lshr_b32 s{sT0}, s{sHD}, 1
    v_xor_b32 v1, s{sT0}, v1
    v_bfe_u32 v2, v{A_LANE}, 4, 1
    s_and_b32 s{sT1}, s{sHD}, 1
    v_xor_b32 v2, s{sT1}, v2
    v_lshl_add_u32 v1, v1, 1, v2
    v_lshlrev_b32 v1, 5, v1
    v_and_b32 v2, 3, v{A_LANE}
    v_lshl_add_u32 v1, v2, 3, v1
    v_add_u32 v{WB}, v{WB}, v1
    s_lshl_b32 s{sT0}, s{sHD}, 14
    v_add_u32 v{WB}, s{sT0}, v{WB}
    v_xor_b32 v{WB+1}, 64, v{WB}
    v_add_u32 v{WA}, {L_WOA}, v{WB}
    v_add_u32 v{WA+1}, {L_WOA}, v{WB+1}""")
    if L_WOB:
        g.e(f"v_add_u32 v{WB}, {L_WOB}, v{WB}\nv_add_u32 v{WB+1}, {L_WOB}, v{WB+1}")
    outproj_part(g, A_OBF, WB, True)
    g.e("s_waitcnt vmcnt(0)")
    o_flag_store(g, WS_FOA)
    g.stamp(9)
    foa_poll = f"buffer_load_dword v{A_POLL}, v{A_PA}, {srd(SRD_WS)}, s{sT5} offen sc1"
    g.e(f"""s_mov_b32 s{sT5}, {WS_FOA}
    {foa_poll}
    s_barrier
    s_waitcnt vmcnt(0)""")
    spin_check(g, foa_poll, "foa")
    g.stamp(10)
    o_frag_loads(g, WS_OA, A_SA)
    for j in range(1, 4):
        g.e(f"""s_xor_b32 s{sT0}, s{sWAVE}, {j}
        s_mul_i32 s{sT0}, s{sT0}, 6144
        s_add_u32 s{sT0}, s{sT0}, {L_RED + (j-1)*2048}
        v_add_u32 v{A_T+j}, s{sT0}, v{A_VK}""")
    g.e(f"""s_mul_i32 s{sT0}, s{sWAVE}, 6144
    s_add_u32 s{sT0}, s{sT0}, {L_RED}
    v_add_u32 v{A_T}, s{sT0}, v{A_VK}
    v_and_b32 v1, 31, v{A_LANE}
    v_lshlrev_b32 v1, 10, v1
    v_lshrrev_b32 v2, 5, v{A_LANE}
    v_lshl_add_u32 v1, v2, 4, v1
    s_lshl_b32 s{sT2}, s{sTILE}, 15
    s_lshl_b32 s{sT0}, s{sQUAD}, 7
    s_add_u32 s{sT2}, s{sT2}, s{sT0}
    s_lshl_b32 s{sT0}, s{sHD}, 5
    s_add_u32 s{sT2}, s{sT2}, s{sT0}""")
    outproj_part(g, A_SA, WA, False)
    g.stamp(11)
    g.e("s_nop 10")
    for j in (1, 2, 3):
        g.e(f"ds_write_b128 v{A_T+j}, {vr(A_ACC+8*j,4)}\nds_write_b128 v{A_T+j}, {vr(A_ACC+8*j+4,4)} offset:1024")
    g.e("s_waitcnt lgkmcnt(0)\ns_barrier")
    for j in range(3):
        g.e(f"ds_read_b128 {vr(A_SA+8*j,4)}, v{A_T} offset:{j*2048}")
        g.e(f"ds_read_b128 {vr(A_SA+8*j+4,4)}, v{A_T} offset:{j*2048+1024}")
    for j in range(3):
        g.e(f"s_waitcnt lgkmcnt({4-2*j})")
        for i in range(8):
            g.e(f"v_add_f32 v{A_ACC+i}, v{A_ACC+i}, v{A_SA+8*j+i}")
    cvt_block(g, A_OA, A_ACC, 8)
    g.e(f"""s_nop 1
    v_permlane32_swap_b32 v{A_OA}, v{A_OA+2}
    v_permlane32_swap_b32 v{A_OA+1}, v{A_OA+3}
    buffer_store_dwordx4 {vr(A_OA,4)}, v1, {srd(SRD_OUT)}, s{sT2} offen {g.opt.get('outmod','')}""")
    if g.opt.get("diag"):
        g.e("s_waitcnt vmcnt(0)")
        g.stamp(12)
        g.e(f"""s_lshl_b32 s{sT0}, s2, 3
        s_add_u32 s{sT0}, s{sT0}, s{sWAVE}
        s_lshl_b32 s{sT0}, s{sT0}, 6
        s_add_u32 s{sT0}, s{sT0}, {WS_DIAG}
        v_mov_b32 v1, 0""")
        for i in range(16):
            g.e(f"v_mov_b32 v{16+i}, s{sST0+i}")
        g.e("s_mov_b64 exec, 1")
        for i in range(4):
            g.e(f"buffer_store_dwordx4 {vr(16+4*i,4)}, v1, {srd(SRD_WS)}, s{sT0} offen offset:{16*i}")
    g.e("L_end:\ns_endpgm")


def fallback(g):
    M = A_T
    g.e(f"""L_fallback:
    s_mov_b32 s{sRETRY}, 1
    s_waitcnt vmcnt(0) lgkmcnt(0)
    v_mov_b32 v{M}, 0xff800000
    v_mov_b32 v{M+1}, 0xff800000
    s_mov_b32 s{sT4}, 0
    L_fb_loop:
    s_add_u32 s{sT0}, s{sT4}, s{sKVB}
    buffer_load_dwordx4 {vr(A_K,4)}, v{A_VK}, {srd(SRD_WS)}, s{sT0} offen sc1
    s_waitcnt vmcnt(0)
    v_mfma_f32_32x32x16_bf16 {vr(A_SA,16)}, {vr(A_K,4)}, {vr(A_Q,4)}, 0
    v_mfma_f32_32x32x16_bf16 {vr(A_SB,16)}, {vr(A_K,4)}, {vr(A_Q+4,4)}, 0
    s_nop 11""")
    for i in range(0, 16, 2):
        g.e(f"v_max3_f32 v{M}, v{A_SA+i}, v{A_SA+i+1}, v{M}")
    for i in range(0, 16, 2):
        g.e(f"v_max3_f32 v{M+1}, v{A_SB+i}, v{A_SB+i+1}, v{M+1}")
    g.e(f"""s_add_u32 s{sT4}, s{sT4}, 2048
    s_cmp_lt_u32 s{sT4}, 65536
    s_cbranch_scc1 L_fb_loop
    v_mov_b32 v{M+2}, v{M}
    v_mov_b32 v{M+3}, v{M+1}
    s_nop 1
    v_permlane32_swap_b32 v{M}, v{M+2}
    v_permlane32_swap_b32 v{M+1}, v{M+3}
    v_max_f32 v{M}, v{M}, v{M+2}
    v_max_f32 v{M+1}, v{M+1}, v{M+3}
    s_lshl_b32 s{sT0}, s{sWAVE}, 9
    s_add_u32 s{sT0}, s{sT0}, {L_MX}
    v_lshl_add_u32 v1, v{A_LANE}, 2, s{sT0}
    v_xor_b32 v2, 2048, v1
    ds_write_b32 v1, v{M}
    ds_write_b32 v1, v{M+1} offset:256
    s_waitcnt lgkmcnt(0)
    s_barrier
    ds_read_b32 v{M+2}, v2 offset:256
    ds_read_b32 v{M+3}, v2
    s_waitcnt lgkmcnt(0)
    v_max_f32 v{M}, v{M}, v{M+2}
    v_max_f32 v{M+1}, v{M+1}, v{M+3}""")
    for i in range(16):
        g.e(f"v_sub_f32 v{A_CA+i}, 0, v{M}\nv_sub_f32 v{A_CB+i}, 0, v{M+1}")
    g.e(f"s_mov_b64 exec, s[{sVMASK}:{sVMASK+1}]")
    for i in range(4):
        g.e(f"v_mov_b32 v{A_V1+12+i}, 0")
    g.e("s_mov_b64 exec, -1")
    att_prefetch(g)
    att_start(g)
    g.e(f"s_mov_b32 s{sT4}, 8\nL_fb_run:")
    for t in range(4):
        att_step(g, t)
        kv_group(g, t + 4, t + 4, t + 3)
        g.e("s_waitcnt vmcnt(6)")
    g.e(f"""s_sub_u32 s{sT4}, s{sT4}, 1
    s_cmp_lg_u32 s{sT4}, 0
    s_cbranch_scc1 L_fb_run
    s_branch L_attn_done""")


HEADER = """; Fused kernel: QKV projections (both branches) -> softmax attention + linear attention -> gated
; output projection.  One workgroup per CU: (row block of 64 tokens) x (4 heads).
; @launch grid=(256,1,1) block=(512,1,1) lds=%d
.amdgcn_target "amdgcn-amd-amdhsa--gfx950"
.text
.globl %s
.p2align 8
.type %s,@function
%s:
"""

FOOTER = """L_codeend:
.section .rodata,"a"
.p2align 6
.amdhsa_kernel %s
  .amdhsa_next_free_vgpr 256
  .amdhsa_next_free_sgpr 102
  .amdhsa_accum_offset 256
  .amdhsa_group_segment_fixed_size 0
  .amdhsa_kernarg_size 80
  .amdhsa_user_sgpr_count 2
  .amdhsa_user_sgpr_kernarg_segment_ptr 1
  .amdhsa_system_sgpr_workgroup_id_x 1
.end_amdhsa_kernel
"""


def generate(opt):
    g = G(opt)
    prologue(g)
    loader(g)
    g.e(f"L_compute:\ns_cmp_ge_u32 s{sWAVE}, 2\ns_cbranch_scc1 L_compute1")
    compute(g, 0)
    g.e("L_compute1:")
    compute(g, 1)
    attention(g)
    fallback(g)
    body = "\n".join(g.o) + "\n"
    errs = hazard.check(body, "gen")
    if errs:
        print("\n".join(errs), file=sys.stderr)
        raise SystemExit("hazards found")
    return HEADER % (LDS_BYTES, KNAME, KNAME, KNAME) + body + FOOTER % KNAME


if __name__ == "__main__":
    opt = {}
    out = "gated_mix__softmax_full_mha__linear_attn_block__prompt.s"
    for a in sys.argv[1:]:
        if "=" in a:
            k, v = a.split("=", 1)
            if k == "out":
                out = v
            else:
                try:
                    opt[k] = int(v, 0)
                except ValueError:
                    opt[k] = v
    open(out, "w").write(generate(opt))
    print("wrote", out)
```

```python
import struct
import sys

sys.path.insert(0, "gen")
import hazard

KNAME = "gated_mix__softmax_full_mha__linear_attn_block__prompt_kernel"


def f32(x):
    return "0x%08x" % struct.unpack("<I", struct.pack("<f", x))[0]


LOG2E = 1.4426950408889634

WS_KV = 0x000000
HEAD_STRIDE = 0x20000
WS_P = 0x400000
WS_OB = 0x500000
WS_OA = 0x700000
WS_FKV = 0x900000
WS_FP = 0x908000
WS_FOB = 0x920000
WS_FOA = 0x930000
WS_DIAG = 0xA00000
WS_SIZE = 0xB00000

L_X = 0
L_RING = 65536
L_STASH = 65536
L_WOB = 0
L_WOA = 81920
L_RED = 0
L_MISC = 147456
L_GATE = L_MISC
L_GP = L_MISC + 1024
L_NONCE = L_MISC + 1536
L_BAD = L_MISC + 1540
L_LX = L_MISC + 2048
L_MX = L_MISC + 4096
LDS_BYTES = 163840

SRD_X, SRD_WA, SRD_WB, SRD_WS, SRD_W2 = 4, 8, 12, 16, 20
SRD_OA, SRD_OB, SRD_OUT, SRD_DBG, SRD_G = 24, 28, 32, 36, 40
sQUAD, sRB, sROT, sWAVE, sNONCE = 44, 45, 46, 47, 48
sT0, sT1, sT2, sT3, sT4, sT5 = 49, 50, 51, 52, 53, 54
sXB, sWB1, sWB2 = 55, 56, 57
sKVB, sKVO, sKVS = 58, 59, 60
sVMASK = 62
sRETRY, sSPIN = 64, 65
sHD, sKH, sTILE = 66, 67, 68
sC1, sC2, sC3 = 69, 70, 71
sHMASK = 72
sKROT = 74
sSTAMP = 76
sST0 = 80

SPIN_MAX = 200000


class G:
    def __init__(self, opt):
        self.o = []
        self.opt = opt
        self.nlabel = 0
        self.nstamp = 0

    def e(self, s):
        for line in s.split("\n"):
            line = line.strip()
            if line:
                self.o.append(line if line.endswith(":") else "    " + line)

    def label(self, p):
        self.nlabel += 1
        return f"L_{p}_{self.nlabel}"

    def vm_reset(self):
        self.vm = []

    def vm_issue(self, tag, n=1, optional=False):
        self.vm += [(tag, optional)] * n

    def vm_wait(self, *tags):
        last = max(i for i, (t, _) in enumerate(self.vm) if t in tags)
        k = sum(1 for t, o in self.vm[last + 1:] if not o)
        assert k <= 63
        self.e(f"s_waitcnt vmcnt({k})")

    def cstamp(self, idx):
        if self.opt.get("diag"):
            self.e(f"s_memtime s[{sSTAMP}:{sSTAMP+1}]\ns_waitcnt lgkmcnt(0)\ns_mov_b32 s{sST0+idx}, s{sSTAMP}")

    def stamp(self, idx):
        if not self.opt.get("diag"):
            return
        self.e(f"s_memrealtime s[{sSTAMP}:{sSTAMP+1}]\ns_waitcnt lgkmcnt(0)\ns_mov_b32 s{sST0+idx}, s{sSTAMP}")


def vr(b, n):
    return f"v[{b}:{b+n-1}]"


def srd(b):
    return f"s[{b}:{b+3}]"


A_Q = 4
A_PQ = 12
A_SA, A_SB = 16, 32
A_OA, A_OB = 48, 64
A_CA, A_CB = 80, 96
A_BATCH = 112
A_OBF = 112
A_ACC = 144
A_DN = 176
A_WF = 176
A_VO = 192
A_T = 196
A_K = 200
A_V0 = 216
A_V1 = 232
A_VK, A_VV, A_IDX, A_G, A_G1, A_POLL, A_PA, A_LANE = 248, 249, 250, 251, 252, 253, 254, 255


def spin_check(g, reload, tag):
    l0, l1 = g.label(tag), g.label(tag + "ok")
    g.e(f"""s_mov_b32 s{sSPIN}, {SPIN_MAX}
    {l0}:
    v_cmp_ne_u32 vcc, s{sNONCE}, v{A_POLL}
    s_sub_u32 s{sSPIN}, s{sSPIN}, 1
    s_cbranch_vccz {l1}
    s_cbranch_scc1 {l1}
    {reload}
    s_waitcnt vmcnt(0)
    s_branch {l0}
    {l1}:""")


def prologue(g):
    g.e(f"""s_cmp_ge_u32 s2, 256
    s_cbranch_scc1 L_end
    s_load_dwordx2 s[{SRD_X}:{SRD_X+1}], s[0:1], 0
    s_load_dwordx2 s[{SRD_WA}:{SRD_WA+1}], s[0:1], 8
    s_load_dwordx2 s[{SRD_G}:{SRD_G+1}], s[0:1], 48
    s_load_dwordx2 s[{SRD_WB}:{SRD_WB+1}], s[0:1], 32
    s_load_dwordx2 s[{SRD_OA}:{SRD_OA+1}], s[0:1], 16
    s_load_dwordx2 s[{SRD_OB}:{SRD_OB+1}], s[0:1], 40
    s_load_dwordx2 s[{SRD_OUT}:{SRD_OUT+1}], s[0:1], 56
    s_load_dwordx2 s[{SRD_DBG}:{SRD_DBG+1}], s[0:1], 64
    s_load_dwordx2 s[{SRD_WS}:{SRD_WS+1}], s[0:1], 72""")
    if g.opt.get("diag"):
        g.e(f"s_memrealtime s[{sSTAMP}:{sSTAMP+1}]")
    g.e(f"""v_lshrrev_b32 v1, 6, v0
    v_and_b32 v{A_LANE}, 63, v0
    v_readfirstlane_b32 s{sWAVE}, v1""")
    for b, sz in ((SRD_X, 0x200000), (SRD_WA, 0x180000), (SRD_G, 1024), (SRD_WB, 0x180000), (SRD_W2, 0x180000),
                  (SRD_OA, 0x80000), (SRD_OB, 0x80000), (SRD_OUT, 0x200000), (SRD_DBG, 256), (SRD_WS, WS_SIZE)):
        g.e(f"s_mov_b32 s{b+2}, {sz:#x}\ns_mov_b32 s{b+3}, 0x00020000")
    g.e(f"""s_and_b32 s{sT0}, s2, 7
    s_lshr_b32 s{sT1}, s2, 3
    s_and_b32 s{sQUAD}, s{sT0}, 3
    s_lshl_b32 s{sQUAD}, s{sQUAD}, 1
    s_and_b32 s{sT2}, s{sT1}, 1
    s_add_u32 s{sQUAD}, s{sQUAD}, s{sT2}
    s_lshr_b32 s{sRB}, s{sT0}, 2
    s_lshl_b32 s{sRB}, s{sRB}, 4
    s_lshr_b32 s{sT3}, s{sT1}, 1
    s_add_u32 s{sRB}, s{sRB}, s{sT3}
    s_lshl_b32 s{sROT}, s{sT2}, 2
    s_add_u32 s{sROT}, s{sROT}, s{sT3}
    s_and_b32 s{sROT}, s{sROT}, 7
    s_and_b32 s{sHD}, s{sWAVE}, 3
    s_lshr_b32 s{sKH}, s{sWAVE}, 2
    s_mov_b32 s{sRETRY}, 0
    s_cmp_ge_u32 s{sWAVE}, 4
    s_cbranch_scc0 L_compute""")


def x_read_addrs(g, base):
    g.e(f"""v_and_b32 v1, 31, v{A_LANE}
    v_lshrrev_b32 v2, 5, v{A_LANE}
    v_bfe_u32 v3, v{A_LANE}, 1, 3
    v_xor_b32 v2, v2, v3
    v_lshlrev_b32 v1, 7, v1""")
    for s in range(4):
        g.e(f"v_xor_b32 v3, {2*s}, v2\nv_lshl_add_u32 v{base+s}, v3, 4, v1")


def loader(g):
    vW, vX, aXg, vG, vGh, fX, fG, acc = 4, 8, 10, 14, 15, 16, 20, 24
    g.e(f"""v_lshrrev_b32 v1, 3, v{A_LANE}
    v_and_b32 v2, 7, v{A_LANE}
    v_bfe_u32 v3, v{A_LANE}, 4, 1
    v_lshlrev_b32 v3, 2, v3
    v_xor_b32 v3, v3, v2
    v_lshlrev_b32 v3, 4, v3
    v_mul_u32_u24 v{vW}, 3072, v1
    v_add_u32 v{vW}, v{vW}, v3
    v_lshrrev_b32 v3, 4, v{A_LANE}
    v_xor_b32 v3, v3, v2
    v_lshlrev_b32 v{vX}, 10, v1
    v_lshl_add_u32 v{vX}, v3, 4, v{vX}
    v_xor_b32 v3, 4, v3
    v_lshlrev_b32 v{vX+1}, 10, v1
    v_lshl_add_u32 v{vX+1}, v3, 4, v{vX+1}
    v_add_u32 v{vX+1}, 7168, v{vX+1}
    v_add_u32 v{vW+1}, {1*23552}, v{vW}
    v_add_u32 v{vW+2}, {2*23552}, v{vW}
    v_add_u32 v{vW+3}, {3*23552}, v{vW}
    v_lshlrev_b32 v{vG}, 4, v{A_LANE}
    s_lshl_b32 s{sXB}, s{sRB}, 16
    s_lshl_b32 s{sT0}, s{sHD}, 14
    s_add_u32 s{sXB}, s{sXB}, s{sT0}
    s_lshl_b32 s{sT1}, s{sQUAD}, 7
    s_lshr_b32 s{sT0}, s{sHD}, 1
    s_lshl_b32 s{sT0}, s{sT0}, 10
    s_add_u32 s{sWB1}, s{sT1}, s{sT0}
    s_add_u32 s{sWB1}, s{sWB1}, 1024
    s_and_b32 s{sT0}, s{sHD}, 1
    s_mul_i32 s{sT0}, s{sT0}, {32*3072}
    s_add_u32 s{sWB1}, s{sWB1}, s{sT0}
    s_add_u32 s{sT0}, s{sHD}, 1
    s_lshl_b32 s{sT0}, s{sT0}, 10
    s_cmp_ge_u32 s{sHD}, 2
    s_cselect_b32 s{sT0}, 0, s{sT0}
    s_add_u32 s{sWB2}, s{sT1}, s{sT0}
    s_lshl_b32 s{sT4}, s{sHD}, 11
    s_lshl_b32 s{sT5}, s{sHD}, 12
    s_mov_b32 m0, {L_GATE}
    s_waitcnt lgkmcnt(0)""")
    if g.opt.get("diag"):
        g.e(f"s_mov_b32 s{sST0}, s{sSTAMP}")
    g.e(f"""buffer_load_dwordx4 v{vG}, {srd(SRD_G)}, 0 offen lds
    s_cmp_eq_u32 s{sHD}, 2
    s_cselect_b32 s{SRD_W2}, s{SRD_WA}, s{SRD_WB}
    s_cselect_b32 s{SRD_W2+1}, s{SRD_WA+1}, s{SRD_WB+1}""")

    def issue(c):
        slot = c % 5
        if c < 8:
            p = c
            g.e(f"""s_add_u32 s{sT0}, s{sROT}, {p}
            s_and_b32 s{sT0}, s{sT0}, 7
            s_lshl_b32 s{sT1}, s{sT0}, 7
            s_add_u32 s{sT1}, s{sT1}, s{sXB}
            s_add_u32 m0, s{sT4}, {L_X + p*8192}
            s_mul_i32 s{sT2}, s{sT0}, {64*3072}
            buffer_load_dwordx4 v{vX}, {srd(SRD_X)}, s{sT1} offen lds
            buffer_load_dwordx4 v{vX+1}, {srd(SRD_X)}, s{sT1} offen offset:1024 lds
            s_add_u32 m0, s{sT5}, {L_RING + slot*16384}
            s_add_u32 s{sT2}, s{sT2}, s{sWB1}""")
            for k in range(4):
                g.e(f"buffer_load_dwordx4 v{vW+k}, {srd(SRD_WA)}, s{sT2} offen offset:{k*1024} lds")
            return 6
        p, sub = (c - 8) >> 1, (c - 8) & 1
        g.e(f"""s_add_u32 s{sT0}, s{sROT}, {p}
        s_and_b32 s{sT0}, s{sT0}, 7
        s_mul_i32 s{sT2}, s{sT0}, {64*3072}
        s_add_u32 m0, s{sT5}, {L_RING + slot*16384}
        s_add_u32 s{sT2}, s{sT2}, s{sWB2}""")
        if sub:
            g.e(f"s_add_u32 s{sT2}, s{sT2}, {32*3072}")
        for k in range(4):
            g.e(f"buffer_load_dwordx4 v{vW+k}, {srd(SRD_W2)}, s{sT2} offen offset:{k*1024} lds")
        return 4

    n = [issue(c) for c in range(4)]
    g.stamp(1)
    x_read_addrs(g, aXg)
    g.e(f"""s_lshr_b32 s{sT0}, s{sHD}, 1
    s_lshl_b32 s{sT0}, s{sT0}, 15
    s_and_b32 s{sT1}, s{sHD}, 1
    s_lshl_b32 s{sT1}, s{sT1}, 12
    s_add_u32 s{sT0}, s{sT0}, s{sT1}""")
    for s in range(4):
        g.e(f"v_add_u32 v{aXg+s}, s{sT0}, v{aXg+s}")
    g.e(f"""v_lshrrev_b32 v{vGh}, 5, v{A_LANE}
    v_lshlrev_b32 v{vGh}, 4, v{vGh}
    v_add_u32 v{vGh}, {L_GATE}, v{vGh}
    v_mov_b32 v{acc}, 0
    v_and_b32 v1, 31, v{A_LANE}
    v_lshlrev_b32 v{A_PA}, 7, v1
    s_lshl_b32 s{sT3}, s{sQUAD}, 12
    s_add_u32 s{sT3}, s{sT3}, {WS_FKV}
    v_add_u32 v{A_PA}, s{sT3}, v{A_PA}""")
    att_const_setup(g)
    pollc = g.opt.get("pollc", 21)
    poll = f"buffer_load_dword v{A_POLL}, v{A_PA}, {srd(SRD_WS)}, 0 offen sc1"
    for c in range(24):
        out = sum(n[c + 1:])
        if c > pollc:
            out += 1
        g.e(f"s_waitcnt vmcnt({out})\ns_barrier")
        if c == 0:
            g.stamp(2)
        if c == 8:
            g.stamp(3)
        if c + 4 < 24:
            n.append(issue(c + 4))
        if c == pollc:
            g.e(poll)
        if c == 1:
            g.e(f"""v_mov_b32 v1, {L_NONCE}
            ds_read_b32 v1, v1
            s_waitcnt lgkmcnt(0)
            v_readfirstlane_b32 s{sNONCE}, v1""")
        if c >= 8:
            i = c - 8
            pi, s = i >> 2, i & 3
            if s == 0:
                g.e(f"""s_lshr_b32 s{sT0}, s{sHD}, 1
                s_lshl_b32 s{sT0}, s{sT0}, 2
                s_add_u32 s{sT0}, s{sT0}, s{sROT}
                s_add_u32 s{sT0}, s{sT0}, {pi}
                s_and_b32 s{sT0}, s{sT0}, 7
                s_lshl_b32 s{sT0}, s{sT0}, 7
                v_add_u32 v{vG}, s{sT0}, v{vGh}""")
            g.e(f"""ds_read_b128 {vr(fX,4)}, v{aXg+s} offset:{pi*8192}
            ds_read_b128 {vr(fG,4)}, v{vG} offset:{s*32}
            s_waitcnt lgkmcnt(0)""")
            for j in range(4):
                g.e(f"v_dot2_f32_bf16 v{acc}, v{fX+j}, v{fG+j}, v{acc}")
    g.e(f"""s_nop 2
    v_mov_b32 v1, v{acc}
    v_and_b32 v2, 31, v{A_LANE}
    v_lshlrev_b32 v2, 2, v2
    v_permlane32_swap_b32 v{acc}, v1
    s_lshl_b32 s{sT0}, s{sHD}, 7
    s_add_u32 s{sT0}, s{sT0}, {L_GP}
    v_add_f32 v1, v1, v{acc}
    v_add_u32 v2, s{sT0}, v2
    ds_write_b32 v2, v1
    s_waitcnt vmcnt(0)""")
    spin_check(g, poll, "fkv")
    g.stamp(4)
    g.e("s_barrier")
    att_prefetch(g)
    g.e("s_waitcnt lgkmcnt(0)\ns_barrier")
    g.e("s_branch L_attn")


def att_const_setup(g):
    g.e(f"""v_lshlrev_b32 v{A_VK}, 4, v{A_LANE}
    v_lshrrev_b32 v1, 5, v{A_LANE}
    v_and_b32 v2, 15, v{A_LANE}
    v_lshlrev_b32 v1, 8, v1
    v_lshl_add_u32 v1, v2, 4, v1
    v_add_u32 v{A_VV}, 1024, v1
    v_mov_b32 v{A_IDX}, 0xdddd
    s_mov_b32 s{sVMASK}, 0xffff
    s_mov_b32 s{sVMASK+1}, 0xffff
    s_mov_b32 s{sHMASK}, 0xffff0000
    s_mov_b32 s{sHMASK+1}, 0xffff0000
    s_lshl_b32 s{sT0}, s{sQUAD}, 2
    s_add_u32 s{sT0}, s{sT0}, s{sHD}
    s_mul_i32 s{sKVB}, s{sT0}, {HEAD_STRIDE}
    s_lshl_b32 s{sT1}, s{sKH}, 16
    s_add_u32 s{sKVB}, s{sKVB}, s{sT1}
    s_lshl_b32 s{sTILE}, s{sRB}, 1
    s_add_u32 s{sTILE}, s{sTILE}, s{sKH}""")
    if WS_KV:
        g.e(f"s_add_u32 s{sKVB}, s{sKVB}, {WS_KV}")
    krot = g.opt.get("krot", 1)
    if krot:
        g.e(f"s_lshl_b32 s{sKROT}, s{sRB}, 12\ns_and_b32 s{sKROT}, s{sKROT}, 0xffff")
    else:
        g.e(f"s_mov_b32 s{sKROT}, 0")
    g.e(f"""v_and_b32 v1, 27, v{A_LANE}
    v_cmp_eq_u32 vcc, 16, v1
    v_mov_b32 v2, 0
    v_mov_b32 v3, 0x3f803f80
    v_cndmask_b32 v1, v2, v3, vcc""")
    for i in range(32):
        g.e(f"v_mov_b32 v{A_V0+i}, v1")
    g.e(f"""v_lshrrev_b32 v1, 3, v{A_LANE}
    v_and_b32 v2, 7, v{A_LANE}
    v_bfe_u32 v3, v{A_LANE}, 4, 1
    v_lshlrev_b32 v3, 2, v3
    v_xor_b32 v3, v3, v2
    v_lshlrev_b32 v3, 4, v3
    v_lshl_add_u32 v{A_VO}, v1, 10, v3
    v_add_u32 v{A_VO+1}, {1*7168}, v{A_VO}
    v_add_u32 v{A_VO+2}, {2*7168}, v{A_VO}
    v_add_u32 v{A_VO+3}, {3*7168}, v{A_VO}""")


def kv_group(g, kt, v0t, v1t):
    if v1t is not None:
        g.e(f"""s_mov_b64 exec, s[{sVMASK}:{sVMASK+1}]
        buffer_load_dwordx4 {vr(A_V1+4*(v1t%4),4)}, v{A_VV}, {srd(SRD_WS)}, s{sKVS} offen offset:512 sc1
        s_add_u32 s{sKVO}, s{sKVO}, 2048
        s_and_b32 s{sKVO}, s{sKVO}, 0xffff
        s_add_u32 s{sKVS}, s{sKVO}, s{sKVB}""")
    else:
        g.e(f"s_mov_b64 exec, s[{sVMASK}:{sVMASK+1}]")
    g.e(f"""buffer_load_dwordx4 {vr(A_V0+4*(v0t%4),4)}, v{A_VV}, {srd(SRD_WS)}, s{sKVS} offen sc1
    s_mov_b64 exec, -1
    buffer_load_dwordx4 {vr(A_K+4*(kt%4),4)}, v{A_VK}, {srd(SRD_WS)}, s{sKVS} offen sc1""")


def att_prefetch(g):
    g.e(f"s_mov_b32 s{sKVO}, s{sKROT}\ns_add_u32 s{sKVS}, s{sKVO}, s{sKVB}")
    kv_group(g, 0, 0, None)
    for t in range(1, 4):
        kv_group(g, t, t, t - 1)


def phi_block(g, src, n):
    T = 160
    for b in range(0, n, 8):
        for j in range(8):
            g.e(f"v_fma_f32 v{T+j}, v{src+b+j}, s{sC1}, v{T+8}")
        for j in range(8):
            g.e(f"v_exp_f32_e64 v{T+j}, v{T+j} clamp")
        for j in range(8):
            g.e(f"v_max_f32 v{src+b+j}, s{sC3}, v{src+b+j}")
        for j in range(8):
            g.e(f"v_add_f32 v{src+b+j}, v{T+j}, v{src+b+j}")


def cvt_block(g, dst, src, n):
    for j in range(n // 2):
        g.e(f"v_cvt_pk_bf16_f32 v{dst+j}, v{src+2*j}, v{src+2*j+1}")


def compute(g, var):
    aX, aW0, aW1, vST = 4, 8, 9, 10
    SET = (16, 32)
    ACC1, ACC2 = 64, 96

    def wa(slot):
        return (aW1, 0) if slot == 4 else (aW0, slot * 16384)

    def reads(c, s, st):
        slot = c % 5
        reg, off = wa(slot)
        b = SET[st]
        if c < 8:
            p, xs = c, s
            woffs = [var * 8192 + s * 2048]
        else:
            p, xs = (c - 8) >> 1, ((c - 8) & 1) * 2 + s
            woffs = [(2 * var) * 4096 + s * 2048, (2 * var + 1) * 4096 + s * 2048]
        g.e(f"ds_read_b128 {vr(b,4)}, v{aX+xs} offset:{L_X + p*8192}")
        for i, wo in enumerate(woffs):
            g.e(f"ds_read_b64_tr_b16 {vr(b+8+4*i,2)}, v{reg} offset:{off+wo}")
            g.e(f"ds_read_b64_tr_b16 {vr(b+10+4*i,2)}, v{reg} offset:{off+wo+512}")
            if i == 0:
                g.e(f"ds_read_b128 {vr(b+4,4)}, v{aX+xs} offset:{L_X + p*8192 + 4096}")
        return 2 + 2 * len(woffs)

    def mfmas(c, st):
        b = SET[st]
        ct_orient = (var == 0) if c < 8 else (var == 1)
        nty = 1 if c < 8 else 2
        for ty in range(nty):
            for tt in range(2):
                acc = (ACC1 + 16 * tt) if c < 8 else (ACC2 + 32 * ty + 16 * tt)
                X, W = vr(b + 4 * tt, 4), vr(b + 8 + 4 * ty, 4)
                A, B = (W, X) if ct_orient else (X, W)
                g.e(f"v_mfma_f32_32x32x16_bf16 {vr(acc,16)}, {A}, {B}, {vr(acc,16)}")

    x_read_addrs(g, aX)
    g.e(f"""v_bfe_u32 v1, v{A_LANE}, 2, 2
    v_lshrrev_b32 v2, 5, v{A_LANE}
    v_lshl_add_u32 v1, v2, 3, v1
    v_lshlrev_b32 v{aW0}, 7, v1
    v_bfe_u32 v1, v{A_LANE}, 3, 1
    s_and_b32 s{sT0}, s{sWAVE}, 1
    v_xor_b32 v1, s{sT0}, v1
    v_bfe_u32 v2, v{A_LANE}, 4, 1
    v_lshl_add_u32 v1, v1, 1, v2
    v_lshlrev_b32 v1, 5, v1
    v_and_b32 v2, 3, v{A_LANE}
    v_lshl_add_u32 v1, v2, 3, v1
    v_add_u32 v{aW0}, v{aW0}, v1
    v_add_u32 v{aW0}, {L_RING}, v{aW0}
    v_add_u32 v{aW1}, 65536, v{aW0}""")
    if var == 0:
        g.e(f"""v_and_b32 v1, 0x33, v{A_LANE}
        v_bfe_u32 v2, v{A_LANE}, 2, 1
        v_lshl_or_b32 v1, v2, 3, v1
        v_bfe_u32 v2, v{A_LANE}, 3, 1
        v_lshl_or_b32 v1, v2, 2, v1
        v_lshlrev_b32 v{vST}, 4, v1""")
    else:
        g.e(f"""v_bfe_u32 v1, v{A_LANE}, 4, 1
        v_mul_u32_u24 v1, {HEAD_STRIDE}, v1
        v_lshrrev_b32 v2, 5, v{A_LANE}
        v_lshl_add_u32 v1, v2, 8, v1
        v_and_b32 v2, 15, v{A_LANE}
        v_lshl_add_u32 v1, v2, 4, v1
        v_add_u32 v{vST}, 1024, v1""")
    for i in range(32):
        g.e(f"v_mov_b32 v{ACC1+i}, 0")
    phi_ty = 0 if var == 0 else 1
    for ty in range(2):
        for i in range(32):
            g.e(f"v_mov_b32 v{ACC2+32*ty+i}, {f32(1e-6) if ty == phi_ty else 0}")
    g.e(f"""s_mov_b32 s{sC1}, {f32(LOG2E)}
    s_mov_b32 s{sC3}, {f32(1e-6)}
    v_mov_b32 v168, {f32(-1e-6*LOG2E)}""")
    att_const_setup(g)
    g.e("s_waitcnt lgkmcnt(0)")
    if g.opt.get("diag"):
        g.e(f"s_mov_b32 s{sST0}, s{sSTAMP}")
    if var == 0:
        l_skip, l_now, l_poll, l_got = g.label("nn"), g.label("nw"), g.label("np"), g.label("ng")
        g.e(f"""s_cmp_eq_u32 s{sWAVE}, 0
        s_cbranch_scc0 {l_skip}
        v_mov_b32 v2, 0
        s_cmp_eq_u32 s2, 0
        s_cbranch_scc0 {l_now}
        s_memrealtime s[{sSTAMP+2}:{sSTAMP+3}]
        s_waitcnt lgkmcnt(0)
        s_or_b32 s{sSTAMP+2}, s{sSTAMP+2}, 1
        v_mov_b32 v1, s{sSTAMP+2}
        buffer_store_dword v1, v2, {srd(SRD_DBG)}, 0 offen sc1
        {l_now}:
        s_mov_b32 s{sSPIN}, {SPIN_MAX}
        {l_poll}:
        {"s_sleep %d" % g.opt["nsleep"] if g.opt.get("nsleep") else ""}
        buffer_load_dword v1, v2, {srd(SRD_DBG)}, 0 offen sc1
        s_waitcnt vmcnt(0)
        v_readfirstlane_b32 s{sNONCE}, v1
        s_sub_u32 s{sSPIN}, s{sSPIN}, 1
        s_cbranch_scc1 {l_got}
        s_cmp_eq_u32 s{sNONCE}, 0
        s_cbranch_scc1 {l_poll}
        {l_got}:
        v_mov_b32 v3, {L_NONCE}
        ds_write_b32 v3, v1
        ds_write_b32 v3, v2 offset:4
        s_waitcnt lgkmcnt(0)
        {l_skip}:""")
    prefetch_touch(g, var)
    g.stamp(1)

    flagc = g.opt.get("flagc", 14)
    st = 0
    pend = None
    for c in range(24):
        ns = 4 if c < 8 else 2
        if c == flagc:
            g.e("s_waitcnt vmcnt(0)")
        g.e("s_barrier")
        if c == 0:
            g.stamp(2)
        if c == flagc and var == 0:
            l = g.label("kf")
            g.e(f"""s_cmp_eq_u32 s{sWAVE}, 0
            s_cbranch_scc0 {l}
            s_lshl_b32 s{sT0}, s{sQUAD}, 5
            s_add_u32 s{sT0}, s{sT0}, s{sRB}
            s_lshl_b32 s{sT0}, s{sT0}, 7
            s_add_u32 s{sT0}, s{sT0}, {WS_FKV}
            v_mov_b32 v1, s{sNONCE}
            v_mov_b32 v2, 0
            s_mov_b64 exec, 1
            buffer_store_dword v1, v2, {srd(SRD_WS)}, s{sT0} offen sc1
            s_mov_b64 exec, -1
            {l}:""")
        for s in range(ns):
            nrd = reads(c, s, st)
            if pend is not None:
                if s > 0:
                    g.e(f"s_waitcnt lgkmcnt({nrd})")
                mfmas(*pend)
                if pend[0] == 7 and c == 8:
                    epilogue_a(g, var, ACC1, vST)
            pend = (c, st)
            st ^= 1
        g.e("s_waitcnt lgkmcnt(0)")
    mfmas(*pend)
    g.stamp(4)
    g.e("s_barrier")
    if var == 1 or True:
        l = g.label("rn")
        g.e(f"""v_mov_b32 v1, {L_NONCE}
        ds_read_b32 v1, v1""")
    att_prefetch(g)
    g.e(f"s_waitcnt lgkmcnt(0)\nv_readfirstlane_b32 s{sNONCE}, v1")
    epilogue_b(g, var, ACC2)
    g.e("s_waitcnt lgkmcnt(0)\ns_barrier")
    if var == 0:
        g.e("s_branch L_attn")


def prefetch_touch(g, var):
    if not g.opt.get("touch", 1):
        return
    l = g.label("pt")
    if var == 0:
        g.e(f"""s_cmp_eq_u32 s{sWAVE}, 1
        s_cbranch_scc0 {l}
        s_getpc_b64 s[{sSTAMP+2}:{sSTAMP+3}]
        L_pc:
        s_sub_u32 s{sSTAMP+2}, s{sSTAMP+2}, L_pc-{KNAME}
        s_subb_u32 s{sSTAMP+3}, s{sSTAMP+3}, 0
        s_lshr_b32 s{sT0}, s2, 3
        s_and_b32 s{sT0}, s{sT0}, 7
        s_lshl_b32 s{sT0}, s{sT0}, 13
        v_lshl_add_u32 v1, v{A_LANE}, 7, s{sT0}
        v_min_u32 v1, L_codeend-{KNAME}-4, v1
        global_load_dword v11, v1, s[{sSTAMP+2}:{sSTAMP+3}]
        {l}:""")
    else:
        l3 = g.label("pt3")
        g.e(f"""s_and_b32 s{sT0}, s{sRB}, 15
        s_lshl_b32 s{sT0}, s{sT0}, 5
        v_and_b32 v1, 31, v{A_LANE}
        v_add_u32 v1, s{sT0}, v1
        v_lshrrev_b32 v2, 5, v{A_LANE}
        s_lshl_b32 s{sT1}, s{sQUAD}, 7
        s_cmp_eq_u32 s{sWAVE}, 2
        s_cbranch_scc0 {l3}
        v_mul_u32_u24 v1, 3072, v1
        v_lshl_add_u32 v2, v2, 10, v1
        buffer_load_dword v11, v2, {srd(SRD_WB)}, s{sT1} offen
        buffer_load_dword v11, v1, {srd(SRD_WB)}, s{sT1} offen offset:2048
        buffer_load_dword v11, v1, {srd(SRD_WA)}, s{sT1} offen
        s_branch {l}
        {l3}:
        v_lshlrev_b32 v1, 10, v1
        buffer_load_dword v11, v1, {srd(SRD_OA)}, s{sT1} offen
        buffer_load_dword v11, v1, {srd(SRD_OB)}, s{sT1} offen
        {l}:""")


def epilogue_a(g, var, ACC1, vST):
    T = 160
    g.e(f"""s_lshl_b32 s{sT0}, s{sQUAD}, 2
    s_and_b32 s{sT1}, s{sWAVE}, 1
    s_lshl_b32 s{sT1}, s{sT1}, 1
    s_add_u32 s{sT0}, s{sT0}, s{sT1}
    s_mul_i32 s{sT0}, s{sT0}, {HEAD_STRIDE}
    s_lshl_b32 s{sT1}, s{sRB}, 12
    s_add_u32 s{sT0}, s{sT0}, s{sT1}
    s_add_u32 s{sT0}, s{sT0}, {WS_KV}
    s_add_u32 s{sT1}, s{sT0}, {HEAD_STRIDE}
    s_nop 4""")
    for tt in range(2):
        if tt == 1:
            pass
        cvt_block(g, T + 8 * tt + 16, ACC1 + 16 * tt, 16)
        for hlf in range(2):
            d = vr(T + 8 * tt + 16 + 4 * hlf, 4)
            if var == 0:
                g.e(f"buffer_store_dwordx4 {d}, v{vST}, {srd(SRD_WS)}, s{sT0+hlf} offen offset:{tt*2048} sc1")
            else:
                g.e(f"buffer_store_dwordx4 {d}, v{vST}, {srd(SRD_WS)}, s{sT0} offen offset:{tt*2048+hlf*512} sc1")
    g.stamp(3)


def epilogue_b(g, var, ACC2):
    if var == 1:
        g.e(f"""s_mov_b32 s{sC2}, {f32(0.25*LOG2E)}
        s_and_b32 s{sT0}, s{sWAVE}, 1
        s_lshl_b32 s{sT0}, s{sT0}, 12
        s_add_u32 s{sT0}, s{sT0}, {L_STASH}
        v_add_u32 v2, s{sT0}, v{A_VK}""")
        for i in range(32):
            g.e(f"v_mul_f32 v{ACC2+i}, s{sC2}, v{ACC2+i}")
        for ty in range(2):
            if ty == 1:
                phi_block(g, ACC2 + 32, 32)
            for tt in range(2):
                d = 16 + 16 * ty + 8 * tt
                cvt_block(g, d, ACC2 + 32 * ty + 16 * tt, 16)
                for i in range(2):
                    g.e(f"ds_write_b128 v2, {vr(d+4*i,4)} offset:{ty*8192 + (i*2+tt)*1024}")
    else:
        PK, VF, ONE, D, Z = 16, 32, 48, 64, 80
        cvt_block(g, VF, ACC2 + 32, 32)
        for i in range(4):
            g.e(f"v_mov_b32 v{ONE+i}, 0x3f803f80")
        for tt in range(2):
            phi_block(g, ACC2 + 16 * tt, 16)
            cvt_block(g, PK + 8 * tt, ACC2 + 16 * tt, 16)
            g.e("s_nop 1")
            for blk in range(2):
                k = 2 * tt + blk
                cD = "0" if k == 0 else vr(D, 16)
                cZ = "0" if k == 0 else vr(Z, 16)
                g.e(f"v_mfma_f32_32x32x16_bf16 {vr(D,16)}, {vr(PK+4*k,4)}, {vr(VF+4*k,4)}, {cD}")
                g.e(f"v_mfma_f32_32x32x16_bf16 {vr(Z,16)}, {vr(PK+4*k,4)}, {vr(ONE,4)}, {cZ}")
        g.e(f"""s_lshl_b32 s{sT0}, s{sQUAD}, 2
        s_and_b32 s{sT1}, s{sWAVE}, 1
        s_lshl_b32 s{sT1}, s{sT1}, 1
        s_add_u32 s{sT0}, s{sT0}, s{sT1}
        s_lshl_b32 s{sT0}, s{sT0}, 5
        s_add_u32 s{sT0}, s{sT0}, s{sRB}
        s_lshl_b32 s{sT0}, s{sT0}, 10
        s_add_u32 s{sT0}, s{sT0}, {WS_P}
        s_add_u32 s{sT1}, s{sT0}, 32768
        v_xor_b32 v2, 256, v{A_VK}
        s_nop 3""")
        cvt_block(g, 96, D, 16)
        cvt_block(g, 104, Z, 16)
        for j in range(4):
            g.e(f"v_cndmask_b32 v{112+j}, v{96+j}, v{104+j}, s[{sHMASK}:{sHMASK+1}]")
        for j in range(4):
            g.e(f"v_cndmask_b32 v{116+j}, v{108+j}, v{100+j}, s[{sHMASK}:{sHMASK+1}]")
        g.e(f"""buffer_store_dwordx4 {vr(112,4)}, v{A_VK}, {srd(SRD_WS)}, s{sT0} offen sc1
        buffer_store_dwordx4 {vr(116,4)}, v2, {srd(SRD_WS)}, s{sT1} offen sc1""")


def att_step(g, t):
    p, q, r = t % 4, (t + 1) % 4, (t - 1) % 4
    SA, SB = A_SA, A_SB

    def ex(b, i0, i1):
        for i in range(i0, i1):
            g.e(f"v_exp_f32 v{b+i}, v{b+i}")

    def sm(o, v, s):
        g.e(f"v_smfmac_f32_32x32x32_bf16 {vr(o,16)}, {vr(v,4)}, {vr(s,8)}, v{A_IDX}")

    g.e("s_setprio 1")
    ex(SA, 0, 1)
    g.e("s_setprio 2")
    ex(SA, 1, 2)
    sm(A_OB, A_V1 + 4 * r, SB + 8)
    ex(SA, 2, 5)
    g.e(f"v_mfma_f32_32x32x16_bf16 {vr(SB,16)}, {vr(A_K+4*p,4)}, {vr(A_Q+4,4)}, {vr(A_CB,16)}")
    ex(SA, 5, 10)
    sm(A_OA, A_V0 + 4 * p, SA)
    ex(SA, 10, 16)
    ex(SB, 0, 2)
    sm(A_OA, A_V1 + 4 * p, SA + 8)
    ex(SB, 2, 5)
    g.e(f"v_mfma_f32_32x32x16_bf16 {vr(SA,16)}, {vr(A_K+4*q,4)}, {vr(A_Q,4)}, {vr(A_CA,16)}")
    ex(SB, 5, 10)
    sm(A_OB, A_V0 + 4 * p, SB)
    ex(SB, 10, 16)
    g.e("s_setprio 0")


def wo_dma(g, part):
    m, half = part >> 1, part & 1
    base = L_WOA if m else L_WOB
    g.e(f"""s_lshl_b32 s{sT0}, s{sWAVE}, 3
    s_add_u32 s{sT0}, s{sT0}, {4*half}
    s_lshl_b32 s{sT1}, s{sT0}, 10
    s_add_u32 m0, s{sT1}, {base}
    s_lshl_b32 s{sT0}, s{sT0}, 13
    s_lshl_b32 s{sT1}, s{sQUAD}, 7
    s_add_u32 s{sT0}, s{sT0}, s{sT1}""")
    for k in range(4):
        g.e(f"buffer_load_dwordx4 v{A_VO+k}, {srd(SRD_OA if m else SRD_OB)}, s{sT0} offen offset:{k*1024} lds")


def o_store_addr(g, base, dst):
    g.e(f"""s_and_b32 s{sT0}, s{sTILE}, 7
    s_xor_b32 s{sT0}, s{sT0}, s{sQUAD}
    s_lshl_b32 s{sT0}, s{sT0}, 2
    s_add_u32 s{sT0}, s{sT0}, s{sHD}
    s_lshl_b32 s{sT0}, s{sT0}, 10
    s_lshl_b32 s{dst}, s{sTILE}, 15
    s_add_u32 s{dst}, s{dst}, s{sT0}
    s_add_u32 s{dst}, s{dst}, {base}""")


def o_flag_store(g, base):
    g.e(f"""s_lshl_b32 s{sT0}, s{sTILE}, 3
    s_add_u32 s{sT0}, s{sT0}, s{sQUAD}
    s_lshl_b32 s{sT0}, s{sT0}, 7
    s_lshl_b32 s{sT1}, s{sHD}, 2
    s_add_u32 s{sT0}, s{sT0}, s{sT1}
    s_add_u32 s{sT0}, s{sT0}, {base}
    v_mov_b32 v{A_T}, s{sNONCE}
    v_mov_b32 v{A_T+1}, 0
    s_mov_b64 exec, 1
    buffer_store_dword v{A_T}, v{A_T+1}, {srd(SRD_WS)}, s{sT0} offen sc1
    s_mov_b64 exec, -1""")


def o_poll_addr(g):
    g.e(f"""v_min_u32 v{A_T}, 7, v{A_LANE}
    v_lshrrev_b32 v{A_T+1}, 2, v{A_T}
    v_and_b32 v{A_T}, 3, v{A_T}
    v_lshlrev_b32 v{A_T}, 2, v{A_T}
    v_lshl_add_u32 v{A_PA}, v{A_T+1}, 7, v{A_T}
    s_lshl_b32 s{sT0}, s{sTILE}, 3
    s_lshl_b32 s{sT1}, s{sHD}, 1
    s_add_u32 s{sT0}, s{sT0}, s{sT1}
    s_lshl_b32 s{sT0}, s{sT0}, 7
    v_add_u32 v{A_PA}, s{sT0}, v{A_PA}""")


def o_frag_loads(g, base, dst):
    for u in range(2):
        g.e(f"""s_lshl_b32 s{sT0}, s{sHD}, 1
        s_add_u32 s{sT0}, s{sT0}, {u}
        s_and_b32 s{sT1}, s{sTILE}, 7
        s_xor_b32 s{sT0}, s{sT0}, s{sT1}
        s_lshl_b32 s{sT0}, s{sT0}, 12
        s_lshl_b32 s{sT1}, s{sTILE}, 15
        s_add_u32 s{sT0}, s{sT0}, s{sT1}
        s_add_u32 s{sT0}, s{sT0}, {base}""")
        for i in range(4):
            g.e(f"buffer_load_dwordx4 {vr(dst+16*u+4*i,4)}, v{A_VK}, {srd(SRD_WS)}, s{sT0} offen offset:{i*1024} sc1")


def hook(g, slot):
    b = g
    fp_poll = f"buffer_load_dword v{A_POLL}, v{A_PA}, {srd(SRD_WS)}, 0 offen sc1"
    fob_poll = f"buffer_load_dword v{A_POLL}, v{A_PA}, {srd(SRD_WS)}, s{sT5} offen sc1"

    def batch(n):
        b.e(f"""s_lshl_b32 s{sT0}, s{sQUAD}, 2
        s_add_u32 s{sT0}, s{sT0}, s{sHD}
        s_lshl_b32 s{sT0}, s{sT0}, 15
        s_add_u32 s{sT0}, s{sT0}, {WS_P + n*16384}""")
        for i in range(16):
            if i and i % 4 == 0:
                b.e(f"s_add_u32 s{sT0}, s{sT0}, 4096")
            b.e(f"buffer_load_dwordx4 {vr(A_BATCH+4*i,4)}, v{A_VK}, {srd(SRD_WS)}, s{sT0} offen offset:{(i%4)*1024} sc1")

    def bm(n):
        for i in range(16):
            c = "0" if (n == 0 and i == 0) else vr(A_DN, 16)
            b.e(f"v_mfma_f32_32x32x16_bf16 {vr(A_DN,16)}, {vr(A_BATCH+4*i,4)}, {vr(A_PQ,4)}, {c}")

    if slot <= 3:
        wo_dma(b, slot)
        g.vm_issue("wo", 4)
    if slot == 1:
        g.vm_wait("pstore")
        g.vm_issue("fp", 1, True)
        l = b.label("fp")
        b.e(f"""s_cmp_lt_u32 s{sWAVE}, 2
        s_cbranch_scc0 {l}
        s_lshl_b32 s{sT0}, s{sQUAD}, 1
        s_add_u32 s{sT0}, s{sT0}, s{sWAVE}
        s_lshl_b32 s{sT0}, s{sT0}, 5
        s_add_u32 s{sT0}, s{sT0}, s{sRB}
        s_lshl_b32 s{sT0}, s{sT0}, 7
        s_add_u32 s{sT0}, s{sT0}, {WS_FP}
        v_mov_b32 v{A_T}, s{sNONCE}
        v_mov_b32 v{A_T+1}, 0
        s_mov_b64 exec, 1
        buffer_store_dword v{A_T}, v{A_T+1}, {srd(SRD_WS)}, s{sT0} offen sc1
        s_mov_b64 exec, -1
        {l}:""")
    if slot == 3:
        b.e(f"""s_lshl_b32 s{sT0}, s{sQUAD}, 1
        s_lshr_b32 s{sT1}, s{sHD}, 1
        s_add_u32 s{sT0}, s{sT0}, s{sT1}
        s_lshl_b32 s{sT0}, s{sT0}, 12
        s_add_u32 s{sT0}, s{sT0}, {WS_FP}
        v_and_b32 v{A_PA}, 31, v{A_LANE}
        v_lshlrev_b32 v{A_PA}, 7, v{A_PA}
        v_add_u32 v{A_PA}, s{sT0}, v{A_PA}
        {fp_poll}""")
        g.vm_issue("fppoll")
    if slot == 4:
        g.vm_wait("fppoll")
        spin_check(b, fp_poll, "fpw")
        batch(0)
        g.vm_issue("b0", 16)
    if slot == 5:
        g.vm_wait("b0")
        bm(0)
        batch(1)
        g.vm_issue("b1", 16)
    if slot == 6:
        g.vm_wait("b1")
        bm(1)
        o_store_addr(b, WS_OB, sT2)
        b.e(f"""s_mov_b32 s{sT1}, {f32(1e-6)}
        s_nop 2
        v_add_f32 v{A_T}, s{sT1}, v{A_DN+8}
        v_rcp_f32 v{A_T}, v{A_T}
        s_nop 0
        v_mul_f32 v{A_T}, v{A_G1}, v{A_T}""")
        for j in range(8):
            b.e(f"v_mul_f32 v{A_DN+j}, v{A_T}, v{A_DN+j}")
        cvt_block(b, A_T, A_DN, 8)
        b.e(f"buffer_store_dwordx4 {vr(A_T,4)}, v{A_VK}, {srd(SRD_WS)}, s{sT2} offen sc1")
        g.vm_issue("obst")
    if slot == 7:
        g.vm_wait("obst")
        o_flag_store(b, WS_FOB)
        g.vm_issue("fob")
    if slot == 10:
        o_poll_addr(b)
        b.e(f"s_mov_b32 s{sT5}, {WS_FOB}\n{fob_poll}")
        g.vm_issue("fobpoll")
    if slot == 11:
        g.vm_wait("fobpoll")
        spin_check(b, fob_poll, "fob")
        o_frag_loads(b, WS_OB, A_OBF)
        g.vm_issue("obf", 8)


def outproj_part(g, frags, wbase_reg, first):
    def rd(i, st):
        for a in range(2):
            for u in range(2):
                g.e(f"ds_read_b64_tr_b16 {vr(A_WF+8*st+4*a+2*u,2)}, v{wbase_reg+a} offset:{i*2048+u*1024}")
    rd(0, 0)
    for i in range(8):
        if i < 7:
            rd(i + 1, (i + 1) & 1)
            g.e("s_waitcnt lgkmcnt(4)")
        else:
            g.e("s_waitcnt lgkmcnt(0)")
        if not first:
            g.e(f"s_waitcnt vmcnt({7-i})")
        for a in range(2):
            acc = vr(A_ACC + 16 * a, 16)
            c = "0" if (first and i == 0) else acc
            g.e(f"v_mfma_f32_32x32x16_bf16 {acc}, {vr(A_WF+8*(i&1)+4*a,4)}, {vr(frags+4*i,4)}, {c}")


def att_start(g):
    for i in range(32):
        g.e(f"v_mov_b32 v{A_OA+i}, 0")
    for i in range(8):
        g.e(f"v_mov_b32 v{A_SB+8+i}, 0")
    g.e(f"""s_waitcnt vmcnt(6)
    v_mfma_f32_32x32x16_bf16 {vr(A_SA,16)}, {vr(A_K,4)}, {vr(A_Q,4)}, {vr(A_CA,16)}
    s_nop 11""")


def attention(g):
    g.e("L_attn:")
    g.stamp(5)
    g.e(f"""s_lshl_b32 s{sT0}, s{sHD}, 11
    s_lshl_b32 s{sT1}, s{sKH}, 10
    s_add_u32 s{sT2}, s{sT0}, s{sT1}
    s_add_u32 s{sT2}, s{sT2}, {L_STASH}
    s_xor_b32 s{sT3}, s{sT2}, 1024
    v_add_u32 v1, s{sT2}, v{A_VK}
    v_add_u32 v2, s{sT3}, v{A_VK}
    ds_read_b128 {vr(A_Q,4)}, v1
    ds_read_b128 {vr(A_Q+4,4)}, v2
    ds_read_b128 {vr(A_PQ,4)}, v1 offset:8192
    v_and_b32 v3, 31, v{A_LANE}
    v_lshlrev_b32 v3, 2, v3
    s_lshl_b32 s{sT0}, s{sKH}, 7
    s_add_u32 s{sT0}, s{sT0}, {L_GP}
    v_add_u32 v3, s{sT0}, v3
    ds_read_b32 v{A_G}, v3
    ds_read_b32 v{A_G1}, v3 offset:256""")
    for i in range(32):
        g.e(f"v_mov_b32 v{A_CA+i}, 0")
    g.e(f"""s_waitcnt lgkmcnt(0)
    v_add_f32 v{A_G}, v{A_G}, v{A_G1}
    v_mul_f32 v{A_G}, {f32(-LOG2E)}, v{A_G}
    v_exp_f32 v{A_G}, v{A_G}
    s_nop 0
    v_add_f32 v{A_G}, 1.0, v{A_G}
    v_rcp_f32 v{A_G}, v{A_G}
    s_nop 0
    v_sub_f32 v{A_G1}, 1.0, v{A_G}""")
    att_start(g)
    g.stamp(6)
    g.cstamp(14)
    g.vm_reset()
    g.vm_issue(-4, 2)
    for u in (-3, -2, -1):
        g.vm_issue(u, 3)
    g.vm_issue("pstore", 2, True)
    for t in range(32):
        att_step(g, t)
        if t < 31:
            if t < 29:
                kv_group(g, t + 4, t + 4, t + 3)
                g.vm_issue(t, 3)
            if t & 1:
                hook(g, t >> 1)
            g.vm_wait(t - 2)
    g.vm_wait("wo", "obf")
    g.e(f"""L_attn_done:
    s_nop 1
    v_smfmac_f32_32x32x32_bf16 {vr(A_OB,16)}, {vr(A_V1+12,4)}, {vr(A_SB+8,8)}, v{A_IDX}""")
    g.stamp(7)
    g.cstamp(15)
    l_ok = g.label("ok")
    g.e(f"""s_xor_b32 s{sT0}, s{sWAVE}, 4
    s_lshl_b32 s{sT1}, s{sT0}, 11
    s_add_u32 s{sT1}, s{sT1}, {L_STASH}
    v_add_u32 v1, s{sT1}, v{A_VK}
    s_lshl_b32 s{sT1}, s{sT0}, 8
    s_add_u32 s{sT1}, s{sT1}, {L_LX}
    v_lshl_add_u32 v2, v{A_LANE}, 2, s{sT1}
    s_mov_b32 s{sT2}, {f32(2.0**30)}
    s_mov_b32 s{sT3}, {f32(2.0**-30)}
    s_lshl_b32 s{sT1}, s{sWAVE}, 11
    s_add_u32 s{sT1}, s{sT1}, {L_STASH}
    v_add_u32 v3, s{sT1}, v{A_VK}
    s_nop 1
    ds_write_b128 v1, {vr(A_OB,4)}
    ds_write_b128 v1, {vr(A_OB+4,4)} offset:1024
    ds_write_b32 v2, v{A_OB+8}
    v_max_f32 v{A_T}, v{A_OA+8}, v{A_OB+8}
    v_min_f32 v{A_T+1}, v{A_OA+8}, v{A_OB+8}
    v_add_f32 v{A_T+2}, v{A_OA+8}, v{A_OB+8}
    v_cmp_nle_f32 vcc, v{A_T+2}, s{sT2}
    v_cmp_nge_f32 s[{sSTAMP+2}:{sSTAMP+3}], v{A_T+1}, s{sT3}
    s_or_b64 vcc, vcc, s[{sSTAMP+2}:{sSTAMP+3}]
    s_cbranch_vccz {l_ok}
    v_mov_b32 v{A_T}, {L_BAD}
    v_mov_b32 v{A_T+1}, 1
    ds_write_b32 v{A_T}, v{A_T+1}
    {l_ok}:
    s_lshl_b32 s{sT1}, s{sWAVE}, 8
    s_add_u32 s{sT1}, s{sT1}, {L_LX}
    v_lshl_add_u32 v2, v{A_LANE}, 2, s{sT1}
    v_mov_b32 v{A_T+3}, {L_BAD}
    s_waitcnt lgkmcnt(0)
    s_barrier
    ds_read_b32 v{A_T+3}, v{A_T+3}
    ds_read_b32 v{A_T}, v2
    ds_read_b128 {vr(A_SA,4)}, v3
    ds_read_b128 {vr(A_SA+4,4)}, v3 offset:1024""")
    o_store_addr(g, WS_OA, sT2)
    g.e(f"""s_waitcnt lgkmcnt(2)
    v_readfirstlane_b32 s{sT3}, v{A_T+3}
    v_add_f32 v{A_T}, v{A_T}, v{A_OA+8}
    v_rcp_f32 v{A_T}, v{A_T}
    s_cmp_gt_u32 s{sT3}, s{sRETRY}
    s_cbranch_scc1 L_fallback
    v_mul_f32 v{A_T}, v{A_G}, v{A_T}
    s_waitcnt lgkmcnt(0)""")
    for j in range(8):
        g.e(f"v_add_f32 v{A_SA+j}, v{A_SA+j}, v{A_OA+j}")
    for j in range(8):
        g.e(f"v_mul_f32 v{A_SA+j}, v{A_T}, v{A_SA+j}")
    cvt_block(g, A_SB, A_SA, 8)
    g.e(f"buffer_store_dwordx4 {vr(A_SB,4)}, v{A_VK}, {srd(SRD_WS)}, s{sT2} offen sc1")
    g.stamp(8)
    WB, WA = A_Q, A_Q + 2
    g.e(f"""v_bfe_u32 v1, v{A_LANE}, 2, 2
    v_lshrrev_b32 v2, 5, v{A_LANE}
    v_lshl_add_u32 v1, v2, 2, v1
    v_lshlrev_b32 v{WB}, 7, v1
    v_bfe_u32 v1, v{A_LANE}, 3, 1
    s_lshr_b32 s{sT0}, s{sHD}, 1
    v_xor_b32 v1, s{sT0}, v1
    v_bfe_u32 v2, v{A_LANE}, 4, 1
    s_and_b32 s{sT1}, s{sHD}, 1
    v_xor_b32 v2, s{sT1}, v2
    v_lshl_add_u32 v1, v1, 1, v2
    v_lshlrev_b32 v1, 5, v1
    v_and_b32 v2, 3, v{A_LANE}
    v_lshl_add_u32 v1, v2, 3, v1
    v_add_u32 v{WB}, v{WB}, v1
    s_lshl_b32 s{sT0}, s{sHD}, 14
    v_add_u32 v{WB}, s{sT0}, v{WB}
    v_xor_b32 v{WB+1}, 64, v{WB}
    v_add_u32 v{WA}, {L_WOA}, v{WB}
    v_add_u32 v{WA+1}, {L_WOA}, v{WB+1}""")
    if L_WOB:
        g.e(f"v_add_u32 v{WB}, {L_WOB}, v{WB}\nv_add_u32 v{WB+1}, {L_WOB}, v{WB+1}")
    outproj_part(g, A_OBF, WB, True)
    g.e("s_waitcnt vmcnt(0)")
    o_flag_store(g, WS_FOA)
    g.stamp(9)
    foa_poll = f"buffer_load_dword v{A_POLL}, v{A_PA}, {srd(SRD_WS)}, s{sT5} offen sc1"
    g.e(f"""s_mov_b32 s{sT5}, {WS_FOA}
    {foa_poll}
    s_barrier
    s_waitcnt vmcnt(0)""")
    spin_check(g, foa_poll, "foa")
    g.stamp(10)
    o_frag_loads(g, WS_OA, A_SA)
    for j in range(1, 4):
        g.e(f"""s_xor_b32 s{sT0}, s{sWAVE}, {j}
        s_mul_i32 s{sT0}, s{sT0}, 6144
        s_add_u32 s{sT0}, s{sT0}, {L_RED + (j-1)*2048}
        v_add_u32 v{A_T+j}, s{sT0}, v{A_VK}""")
    g.e(f"""s_mul_i32 s{sT0}, s{sWAVE}, 6144
    s_add_u32 s{sT0}, s{sT0}, {L_RED}
    v_add_u32 v{A_T}, s{sT0}, v{A_VK}
    v_and_b32 v1, 31, v{A_LANE}
    v_lshlrev_b32 v1, 10, v1
    v_lshrrev_b32 v2, 5, v{A_LANE}
    v_lshl_add_u32 v1, v2, 4, v1
    s_lshl_b32 s{sT2}, s{sTILE}, 15
    s_lshl_b32 s{sT0}, s{sQUAD}, 7
    s_add_u32 s{sT2}, s{sT2}, s{sT0}
    s_lshl_b32 s{sT0}, s{sHD}, 5
    s_add_u32 s{sT2}, s{sT2}, s{sT0}""")
    outproj_part(g, A_SA, WA, False)
    g.stamp(11)
    g.e("s_nop 10")
    for j in (1, 2, 3):
        g.e(f"ds_write_b128 v{A_T+j}, {vr(A_ACC+8*j,4)}\nds_write_b128 v{A_T+j}, {vr(A_ACC+8*j+4,4)} offset:1024")
    g.e("s_waitcnt lgkmcnt(0)\ns_barrier")
    for j in range(3):
        g.e(f"ds_read_b128 {vr(A_SA+8*j,4)}, v{A_T} offset:{j*2048}")
        g.e(f"ds_read_b128 {vr(A_SA+8*j+4,4)}, v{A_T} offset:{j*2048+1024}")
    for j in range(3):
        g.e(f"s_waitcnt lgkmcnt({4-2*j})")
        for i in range(8):
            g.e(f"v_add_f32 v{A_ACC+i}, v{A_ACC+i}, v{A_SA+8*j+i}")
    cvt_block(g, A_OA, A_ACC, 8)
    g.e(f"""s_nop 1
    v_permlane32_swap_b32 v{A_OA}, v{A_OA+2}
    v_permlane32_swap_b32 v{A_OA+1}, v{A_OA+3}
    buffer_store_dwordx4 {vr(A_OA,4)}, v1, {srd(SRD_OUT)}, s{sT2} offen {g.opt.get('outmod','')}""")
    if g.opt.get("diag"):
        g.e("s_waitcnt vmcnt(0)")
        g.stamp(12)
        g.e(f"""s_lshl_b32 s{sT0}, s2, 3
        s_add_u32 s{sT0}, s{sT0}, s{sWAVE}
        s_lshl_b32 s{sT0}, s{sT0}, 6
        s_add_u32 s{sT0}, s{sT0}, {WS_DIAG}
        v_mov_b32 v1, 0""")
        for i in range(16):
            g.e(f"v_mov_b32 v{16+i}, s{sST0+i}")
        g.e("s_mov_b64 exec, 1")
        for i in range(4):
            g.e(f"buffer_store_dwordx4 {vr(16+4*i,4)}, v1, {srd(SRD_WS)}, s{sT0} offen offset:{16*i}")
    g.e("L_end:\ns_endpgm")


def fallback(g):
    M = A_T
    g.e(f"""L_fallback:
    s_mov_b32 s{sRETRY}, 1
    s_waitcnt vmcnt(0) lgkmcnt(0)
    v_mov_b32 v{M}, 0xff800000
    v_mov_b32 v{M+1}, 0xff800000
    s_mov_b32 s{sT4}, 0
    L_fb_loop:
    s_add_u32 s{sT0}, s{sT4}, s{sKVB}
    buffer_load_dwordx4 {vr(A_K,4)}, v{A_VK}, {srd(SRD_WS)}, s{sT0} offen sc1
    s_waitcnt vmcnt(0)
    v_mfma_f32_32x32x16_bf16 {vr(A_SA,16)}, {vr(A_K,4)}, {vr(A_Q,4)}, 0
    v_mfma_f32_32x32x16_bf16 {vr(A_SB,16)}, {vr(A_K,4)}, {vr(A_Q+4,4)}, 0
    s_nop 11""")
    for i in range(0, 16, 2):
        g.e(f"v_max3_f32 v{M}, v{A_SA+i}, v{A_SA+i+1}, v{M}")
    for i in range(0, 16, 2):
        g.e(f"v_max3_f32 v{M+1}, v{A_SB+i}, v{A_SB+i+1}, v{M+1}")
    g.e(f"""s_add_u32 s{sT4}, s{sT4}, 2048
    s_cmp_lt_u32 s{sT4}, 65536
    s_cbranch_scc1 L_fb_loop
    v_mov_b32 v{M+2}, v{M}
    v_mov_b32 v{M+3}, v{M+1}
    s_nop 1
    v_permlane32_swap_b32 v{M}, v{M+2}
    v_permlane32_swap_b32 v{M+1}, v{M+3}
    v_max_f32 v{M}, v{M}, v{M+2}
    v_max_f32 v{M+1}, v{M+1}, v{M+3}
    s_lshl_b32 s{sT0}, s{sWAVE}, 9
    s_add_u32 s{sT0}, s{sT0}, {L_MX}
    v_lshl_add_u32 v1, v{A_LANE}, 2, s{sT0}
    v_xor_b32 v2, 2048, v1
    ds_write_b32 v1, v{M}
    ds_write_b32 v1, v{M+1} offset:256
    s_waitcnt lgkmcnt(0)
    s_barrier
    ds_read_b32 v{M+2}, v2 offset:256
    ds_read_b32 v{M+3}, v2
    s_waitcnt lgkmcnt(0)
    v_max_f32 v{M}, v{M}, v{M+2}
    v_max_f32 v{M+1}, v{M+1}, v{M+3}""")
    for i in range(16):
        g.e(f"v_sub_f32 v{A_CA+i}, 0, v{M}\nv_sub_f32 v{A_CB+i}, 0, v{M+1}")
    g.e(f"s_mov_b64 exec, s[{sVMASK}:{sVMASK+1}]")
    for i in range(4):
        g.e(f"v_mov_b32 v{A_V1+12+i}, 0")
    g.e("s_mov_b64 exec, -1")
    att_prefetch(g)
    att_start(g)
    g.e(f"s_mov_b32 s{sT4}, 8\nL_fb_run:")
    for t in range(4):
        att_step(g, t)
        kv_group(g, t + 4, t + 4, t + 3)
        g.e("s_waitcnt vmcnt(6)")
    g.e(f"""s_sub_u32 s{sT4}, s{sT4}, 1
    s_cmp_lg_u32 s{sT4}, 0
    s_cbranch_scc1 L_fb_run
    s_branch L_attn_done""")


HEADER = """; Fused kernel: QKV projections (both branches) -> softmax attention + linear attention -> gated
; output projection.  One workgroup per CU: (row block of 64 tokens) x (4 heads).
; @launch grid=(256,1,1) block=(512,1,1) lds=%d
.amdgcn_target "amdgcn-amd-amdhsa--gfx950"
.text
.globl %s
.p2align 8
.type %s,@function
%s:
"""

FOOTER = """L_codeend:
.section .rodata,"a"
.p2align 6
.amdhsa_kernel %s
  .amdhsa_next_free_vgpr 256
  .amdhsa_next_free_sgpr 102
  .amdhsa_accum_offset 256
  .amdhsa_group_segment_fixed_size 0
  .amdhsa_kernarg_size 80
  .amdhsa_user_sgpr_count 2
  .amdhsa_user_sgpr_kernarg_segment_ptr 1
  .amdhsa_system_sgpr_workgroup_id_x 1
.end_amdhsa_kernel
"""


def generate(opt):
    g = G(opt)
    prologue(g)
    loader(g)
    g.e(f"L_compute:\ns_cmp_ge_u32 s{sWAVE}, 2\ns_cbranch_scc1 L_compute1")
    compute(g, 0)
    g.e("L_compute1:")
    compute(g, 1)
    attention(g)
    fallback(g)
    body = "\n".join(g.o) + "\n"
    errs = hazard.check(body, "gen")
    if errs:
        print("\n".join(errs), file=sys.stderr)
        raise SystemExit("hazards found")
    return HEADER % (LDS_BYTES, KNAME, KNAME, KNAME) + body + FOOTER % KNAME


if __name__ == "__main__":
    opt = {}
    out = "gated_mix__softmax_full_mha__linear_attn_block__prompt.s"
    for a in sys.argv[1:]:
        if "=" in a:
            k, v = a.split("=", 1)
            if k == "out":
                out = v
            else:
                try:
                    opt[k] = int(v, 0)
                except ValueError:
                    opt[k] = v
    open(out, "w").write(generate(opt))
    print("wrote", out)
```

```python
import struct
import sys

sys.path.insert(0, "gen")
import hazard

KNAME = "gated_mix__softmax_full_mha__linear_attn_block__prompt_kernel"


def f32(x):
    return "0x%08x" % struct.unpack("<I", struct.pack("<f", x))[0]


LOG2E = 1.4426950408889634

WS_KV = 0x000000
HEAD_STRIDE = 0x20000
WS_P = 0xB00000
JS = int(__import__('os').environ.get('JS', 128))
HS = 9 * JS if JS > 128 else 2048
WS_OB = 0x500000
WS_OA = 0x700000
WS_FKV = 0x900000
WS_FP = 0x908000
WS_FOB = 0x920000
WS_FOA = 0x930000
WS_DIAG = 0xA00000
WS_SIZE = 0xD00000

L_X = 0
L_RING = 65536
L_STASH = 65536
L_WOB = 0
L_WOA = 81920
L_RED = 0
L_MISC = 147456
L_GATE = L_MISC
L_GP = L_MISC + 1024
L_NONCE = L_MISC + 1536
L_BAD = L_MISC + 1540
L_PQC = L_MISC + 1544
L_QC = L_MISC + 1548
L_WBC = L_MISC + 1552
L_LX = L_MISC + 2048
L_MX = L_MISC + 4096
LDS_BYTES = 163840

SRD_X, SRD_WA, SRD_WB, SRD_WS, SRD_W2 = 4, 8, 12, 16, 20
SRD_OA, SRD_OB, SRD_OUT, SRD_DBG, SRD_G = 24, 28, 32, 36, 40
sQUAD, sRB, sROT, sWAVE, sNONCE = 44, 45, 46, 47, 48
sT0, sT1, sT2, sT3, sT4, sT5 = 49, 50, 51, 52, 53, 54
sXB, sWB1, sWB2 = 55, 56, 57
sWOM, sWOS, sAT = 55, 56, 57
sKVB, sKVO, sKVS = 58, 59, 60
sKROT = 61
sVMASK = 62
sRETRY, sSPIN = 64, 65
sHD, sKH, sTILE = 66, 67, 68
sC3 = 69
sC1 = 70
sHMASK = 72
sC2 = 74
sSTAMP = 76
sP = 78
sOT, sOC, sQKB = 96, 97, 98
sGM = 100
sST0 = 80

SPIN_MAX = 100000

KD = 6
A_Q = 4
A_PQ = 12
A_SA, A_SB = 16, 32
A_OA, A_OB = 48, 64
A_CA, A_CB = 80, 96
A_KVL = 80
A_K = 112
A_ACC = 112
A_NV, A_ZV, A_KVA = 136, 137, 138
A_OBF = 144
A_ATD, A_ATA = 144, 153
A_DN = 176
A_WB, A_RA, A_OUTA, A_OUTX = 240, 12, 253, 253
A_V0 = 192
A_V1 = 216
A_WF = 192
A_VO = 240
A_T = 244
A_VK, A_VV, A_IDX, A_G, A_G1, A_POLL, A_PA, A_LANE = 248, 249, 250, 251, 252, 253, 254, 255


class G:
    def __init__(self, opt):
        self.o = []
        self.opt = opt
        self.nlabel = 0

    def e(self, s):
        for line in s.split("\n"):
            line = line.strip()
            if line:
                self.o.append(line if line.endswith(":") else "    " + line)

    def label(self, p):
        self.nlabel += 1
        return f"L_{p}_{self.nlabel}"

    def vm_reset(self):
        self.vm = []

    def vm_issue(self, tag, n=1, optional=False):
        self.vm += [(tag, optional)] * n

    def vm_wait(self, *tags):
        idx = [i for i, (t, _) in enumerate(self.vm) if t in tags]
        if not idx:
            return
        last = max(idx)
        k = sum(1 for t, o in self.vm[last + 1:] if not o)
        assert k <= 63
        self.e(f"s_waitcnt vmcnt({k})")

    def lds(self, tag, text):
        self.e(text)
        self.lgq.append(tag)

    def lds_wait_tag(self, tag):
        last = max(i for i, t in enumerate(self.lgq) if t == tag)
        self.e(f"s_waitcnt lgkmcnt({min(15, len(self.lgq) - 1 - last)})")

    def cstamp(self, idx):
        if self.opt.get("diag") and not self.opt.get("only"):
            self.e(f"s_memtime s[{sSTAMP}:{sSTAMP+1}]\ns_waitcnt lgkmcnt(0)\ns_mov_b32 s{sST0+idx}, s{sSTAMP}")

    def stamp(self, idx):
        if self.opt.get("kst") and 8 <= idx <= 13 and getattr(self, "att", False):
            return
        if self.opt.get("only") and idx not in self.opt["only"]:
            return
        if self.opt.get("diag"):
            self.e(f"s_memrealtime s[{sSTAMP}:{sSTAMP+1}]\ns_waitcnt lgkmcnt(0)\ns_mov_b32 s{sST0+idx}, s{sSTAMP}")


def vr(b, n):
    return f"v[{b}:{b+n-1}]"


def srd(b):
    return f"s[{b}:{b+3}]"


def sp(b):
    return f"s[{b}:{b+1}]"


def spin_check(g, reload, tag):
    l0, l1 = g.label(tag), g.label(tag + "ok")
    g.e(f"""s_mov_b32 s{sSPIN}, {SPIN_MAX}
    {l0}:
    v_cmp_ne_u32 vcc, s{sNONCE}, v{A_POLL}
    s_sub_u32 s{sSPIN}, s{sSPIN}, 1
    s_cbranch_vccz {l1}
    s_cbranch_scc1 {l1}
    {reload}
    s_waitcnt vmcnt(0)
    s_branch {l0}
    {l1}:""")


SRD_SIZES = {SRD_X: 0x200000, SRD_WA: 0x180000, SRD_G: 1024, SRD_WB: 0x180000, SRD_W2: 0x180000,
             SRD_OA: 0x80000, SRD_OB: 0x80000, SRD_OUT: 0x200000, SRD_DBG: 256, SRD_WS: WS_SIZE}


def srd_words(g, which):
    for b in which:
        g.e(f"s_mov_b32 s{b+2}, {SRD_SIZES[b]:#x}\ns_mov_b32 s{b+3}, 0x00020000")


def prologue(g):
    g.e(f"""s_load_dwordx2 {sp(SRD_X)}, s[0:1], 0
    s_load_dwordx2 {sp(SRD_WA)}, s[0:1], 8
    s_load_dwordx2 {sp(SRD_G)}, s[0:1], 48
    s_load_dwordx2 {sp(SRD_WB)}, s[0:1], 32
    s_load_dwordx2 {sp(SRD_OA)}, s[0:1], 16
    s_load_dwordx2 {sp(SRD_OB)}, s[0:1], 40
    s_load_dwordx2 {sp(SRD_OUT)}, s[0:1], 56
    s_load_dwordx2 {sp(SRD_DBG)}, s[0:1], 64
    s_load_dwordx2 {sp(SRD_WS)}, s[0:1], 72""")
    if g.opt.get("diag"):
        g.e(f"s_memrealtime {sp(sSTAMP)}")
    g.e(f"""s_cmp_ge_u32 s2, 256
    s_cbranch_scc1 L_end
    v_lshrrev_b32 v1, 6, v0
    v_and_b32 v{A_LANE}, 63, v0
    v_readfirstlane_b32 s{sWAVE}, v1""")
    if g.opt.get("map") == 1:
        g.e(f"""s_lshr_b32 s{sT1}, s2, 3
        s_and_b32 s{sQUAD}, s2, 1
        s_lshl_b32 s{sQUAD}, s{sQUAD}, 2
        s_and_b32 s{sT2}, s{sT1}, 3
        s_add_u32 s{sQUAD}, s{sQUAD}, s{sT2}
        s_and_b32 s{sRB}, s2, 6
        s_lshl_b32 s{sRB}, s{sRB}, 2
        s_lshr_b32 s{sT3}, s2, 5
        s_add_u32 s{sRB}, s{sRB}, s{sT3}
        s_lshl_b32 s{sROT}, s{sT2}, 1
        s_add_u32 s{sROT}, s{sROT}, s{sT3}
        s_and_b32 s{sROT}, s{sROT}, 7
        s_and_b32 s{sHD}, s{sWAVE}, 3
        s_lshr_b32 s{sKH}, s{sWAVE}, 2
        s_cmp_ge_u32 s{sWAVE}, 4
        s_cbranch_scc0 L_compute""")
        return
    g.e(f"""s_lshr_b32 s{sT1}, s2, 3
    s_and_b32 s{sQUAD}, s2, 3
    s_lshl_b32 s{sQUAD}, s{sQUAD}, 1
    s_and_b32 s{sT2}, s{sT1}, 1
    s_add_u32 s{sQUAD}, s{sQUAD}, s{sT2}
    s_and_b32 s{sRB}, s2, 4
    s_lshl_b32 s{sRB}, s{sRB}, 2
    s_lshr_b32 s{sT3}, s2, 4
    s_add_u32 s{sRB}, s{sRB}, s{sT3}
    s_lshl_b32 s{sROT}, s{sT2}, 2
    s_add_u32 s{sROT}, s{sROT}, s{sT3}
    s_and_b32 s{sROT}, s{sROT}, 7
    s_and_b32 s{sHD}, s{sWAVE}, 3
    s_lshr_b32 s{sKH}, s{sWAVE}, 2
    s_cmp_ge_u32 s{sWAVE}, 4
    s_cbranch_scc0 L_compute""")


def nonce_check(g, vdat, vzero):
    l, lp = g.label("nn"), g.label("np")
    g.e(f"""s_mov_b32 s{sSPIN}, {SPIN_MAX}
    {lp}:
    v_readfirstlane_b32 s{sNONCE}, v{vdat}
    s_sub_u32 s{sSPIN}, s{sSPIN}, 1
    s_cbranch_scc1 {l}
    s_cmp_lg_u32 s{sNONCE}, 0
    s_cbranch_scc1 {l}
    buffer_load_dword v{vdat}, v{vzero}, {srd(SRD_DBG)}, 0 offen sc1
    s_waitcnt vmcnt(0)
    s_branch {lp}
    {l}:""")


def lds_count(g, addr):
    g.e(f"""v_mov_b32 v1, {addr}
    v_mov_b32 v2, 1
    s_waitcnt lgkmcnt(0)
    s_mov_b64 exec, 1
    ds_add_u32 v1, v2
    s_mov_b64 exec, -1""")


def lds_wait(g, vaddr, vdat, n, tag):
    l0, l1 = g.label(tag), g.label(tag + "ok")
    g.e(f"""s_mov_b32 s{sSPIN}, {SPIN_MAX}
    {l0}:
    s_waitcnt lgkmcnt(0)
    v_readfirstlane_b32 s{sT0}, v{vdat}
    s_sub_u32 s{sSPIN}, s{sSPIN}, 1
    s_cbranch_scc1 {l1}
    s_cmp_eq_u32 s{sT0}, {n}
    s_cbranch_scc1 {l1}
    ds_read_b32 v{vdat}, v{vaddr}
    s_branch {l0}
    {l1}:""")


def zero_o(g):
    for b in (A_OA, A_OB):
        for i in range(0, 10, 2):
            g.e(f"v_mov_b64 {vr(b+i,2)}, 0")


def quad_off(g, dst, which):
    off = dict(k=1, v=2, kb=4, zero=5, pk=-1, pv=-2)[which] if g.opt.get("spread", 1) else 0
    return [f"s_add_u32 s{dst}, s{sQUAD}, {off & 7}", f"s_and_b32 s{dst}, s{dst}, 7"]


def x_read_addrs(g, base):
    g.e(f"""v_and_b32 v1, 31, v{A_LANE}
    v_lshrrev_b32 v2, 5, v{A_LANE}
    v_bfe_u32 v3, v{A_LANE}, 1, 3
    v_xor_b32 v2, v2, v3
    v_lshlrev_b32 v1, 7, v1""")
    for s in range(4):
        g.e(f"v_xor_b32 v3, {2*s}, v2\nv_lshl_add_u32 v{base+s}, v3, 4, v1")


def loader(g):
    D = g.opt.get("D", 3)
    vW, vX, aXg, vG, vGh, acc = 4, 8, 10, 14, 15, 16
    fX, fG = 80, 144
    srd_words(g, (SRD_X, SRD_WA))
    g.e(f"""v_lshrrev_b32 v1, 3, v{A_LANE}
    v_and_b32 v2, 7, v{A_LANE}
    v_lshrrev_b32 v3, 4, v{A_LANE}
    v_xor_b32 v3, v3, v2
    v_lshlrev_b32 v{vX}, 10, v1
    v_lshl_add_u32 v{vX}, v3, 4, v{vX}
    v_xor_b32 v{vX+1}, 64, v{vX}
    v_add_u32 v{vX+1}, 7168, v{vX+1}
    v_bfe_u32 v3, v{A_LANE}, 4, 1
    v_lshlrev_b32 v3, 2, v3
    v_xor_b32 v3, v3, v2
    v_lshlrev_b32 v3, 4, v3
    v_mul_u32_u24 v{vW}, 3072, v1
    v_add_u32 v{vW}, v{vW}, v3
    v_add_u32 v{vW+1}, {1*23552}, v{vW}
    v_add_u32 v{vW+2}, {2*23552}, v{vW}
    v_add_u32 v{vW+3}, {3*23552}, v{vW}
    s_lshl_b32 s{sXB}, s{sRB}, 16
    s_lshl_b32 s{sT0}, s{sHD}, 14
    s_add_u32 s{sXB}, s{sXB}, s{sT0}
    s_lshr_b32 s{sT0}, s{sHD}, 1
    s_add_u32 s{sT3}, s{sQUAD}, s{sT0}
    s_add_u32 s{sT3}, s{sT3}, 1
    {"" if g.opt.get("spread", 1) else f"s_mov_b32 s{sT3}, s{sQUAD}"}
    s_and_b32 s{sT3}, s{sT3}, 7
    s_lshl_b32 s{sT3}, s{sT3}, 7
    s_lshl_b32 s{sT0}, s{sT0}, 10
    s_add_u32 s{sWB1}, s{sT3}, s{sT0}
    s_add_u32 s{sWB1}, s{sWB1}, 1024
    s_and_b32 s{sT0}, s{sHD}, 1
    s_mul_i32 s{sT0}, s{sT0}, {32*3072}
    s_add_u32 s{sWB1}, s{sWB1}, s{sT0}
    s_lshl_b32 s{sT4}, s{sHD}, 11
    s_lshl_b32 s{sT5}, s{sHD}, 12
    s_waitcnt lgkmcnt(0)""")
    if g.opt.get("diag"):
        g.e(f"s_mov_b32 s{sST0}, s{sSTAMP}")

    def issue(c):
        slot = c % 5
        if c < 8:
            p = c
            g.e(f"""s_add_u32 s{sT0}, s{sROT}, {p}
            s_and_b32 s{sT0}, s{sT0}, 7
            s_lshl_b32 s{sT1}, s{sT0}, 7
            s_add_u32 s{sT1}, s{sT1}, s{sXB}
            s_add_u32 m0, s{sT4}, {L_X + p*8192}
            s_mul_i32 s{sT2}, s{sT0}, {64*3072}
            buffer_load_dwordx4 v{vX}, {srd(SRD_X)}, s{sT1} offen lds
            buffer_load_dwordx4 v{vX+1}, {srd(SRD_X)}, s{sT1} offen offset:1024 lds
            s_add_u32 m0, s{sT5}, {L_RING + slot*16384}
            s_add_u32 s{sT2}, s{sT2}, s{sWB1}""")
            for k in range(4):
                g.e(f"buffer_load_dwordx4 v{vW+k}, {srd(SRD_WA)}, s{sT2} offen offset:{k*1024} lds")
            if c == 0:
                srd_words(g, (SRD_G,))
                g.e(f"""s_mov_b32 m0, {L_GATE}
                v_lshlrev_b32 v{vG}, 4, v{A_LANE}
                buffer_load_dwordx4 v{vG}, {srd(SRD_G)}, 0 offen lds""")
                return 7
            return 6
        p, sub = (c - 8) >> 1, (c - 8) & 1
        g.e(f"""s_add_u32 s{sT0}, s{sROT}, {p}
        s_and_b32 s{sT0}, s{sT0}, 7
        s_mul_i32 s{sT2}, s{sT0}, {64*3072}
        s_add_u32 m0, s{sT5}, {L_RING + slot*16384}
        s_add_u32 s{sT2}, s{sT2}, s{sWB2}""")
        if sub:
            g.e(f"s_add_u32 s{sT2}, s{sT2}, {32*3072}")
        n = 4
        for k in range(4):
            g.e(f"buffer_load_dwordx4 v{vW+k}, {srd(SRD_W2)}, s{sT2} offen offset:{k*1024} lds")
        return n

    D0 = g.opt.get("D0", 2)
    n = [issue(c) for c in range(D0)]
    g.stamp(1)
    srd_words(g, (SRD_WB, SRD_W2, SRD_OA, SRD_OB, SRD_OUT, SRD_DBG, SRD_WS))
    g.e(f"""s_cmp_eq_u32 s{sHD}, 2
    s_cselect_b32 s{SRD_W2}, s{SRD_WA}, s{SRD_WB}
    s_cselect_b32 s{SRD_W2+1}, s{SRD_WA+1}, s{SRD_WB+1}
""")
    att_const_setup(g)
    g.e(f"""s_add_u32 s{sT0}, s{sHD}, 1
    s_lshl_b32 s{sT0}, s{sT0}, 10
    s_cmp_ge_u32 s{sHD}, 2
    s_cselect_b32 s{sT0}, 0, s{sT0}
    s_cselect_b32 s{sT3}, s{sQUAD}, s{sQKB}
    s_lshl_b32 s{sT3}, s{sT3}, 7
    s_add_u32 s{sWB2}, s{sT3}, s{sT0}""")
    g.e("\n".join(quad_off(g, sT0, "pk") + quad_off(g, sT1, "pv")))
    g.e(f"""v_mov_b32 v1, s{sT0}
    v_mov_b32 v2, s{sT1}
    v_cmp_gt_u32 vcc, 32, v{A_LANE}
    v_and_b32 v3, 31, v{A_LANE}
    s_nop 0
    v_cndmask_b32 v1, v2, v1, vcc
    v_lshl_add_u32 v1, v1, 5, v3
    v_lshlrev_b32 v1, 7, v1
    v_add_u32 v{A_PA}, {WS_FKV}, v1""")
    g.e("v_mov_b32 v13, 0")
    early = g.opt.get("early", 0)
    pollc = g.opt.get("pollc", 21 if early else 22)
    poll = f"buffer_load_dword v{A_POLL}, v{A_PA}, {srd(SRD_WS)}, 0 offen sc1"
    for c in range(24):
        out = sum(n[c + 1:])
        if c > pollc:
            out += 2
        if early and c == 23:
            g.e("s_barrier")
            continue
        if g.opt.get("bst") and c:
            g.e(f"s_waitcnt lgkmcnt(0)\nv_writelane_b32 v40, s92, {c-1}\nv_writelane_b32 v41, s94, {c-1}")
        g.e(f"s_waitcnt vmcnt({out})\ns_barrier")
        if g.opt.get("bst"):
            g.e("s_memtime s[92:93]\ns_memrealtime s[94:95]")
        if c == 0:
            g.stamp(2)
        if c == 8:
            g.stamp(3)
        look = g.opt.get("look")
        d = look[c] if look else D
        assert d <= 4
        while len(n) < min(24, c + 1 + d):
            n.append(issue(len(n)))
        if c == pollc:
            g.e(f"buffer_load_dword v12, v13, {srd(SRD_DBG)}, 0 offen sc1\n{poll}")
        if early and c == 22:
            l = g.label("early")
            g.e(f"""s_waitcnt vmcnt(0)
            v_readfirstlane_b32 s{sNONCE}, v12
            s_mov_b32 s{sT4}, 0
            s_cmp_eq_u32 s{sNONCE}, 0
            s_cbranch_scc1 {l}
            v_cmp_ne_u32 vcc, s{sNONCE}, v{A_POLL}
            s_cbranch_vccnz {l}
            s_mov_b32 s{sT4}, 1""")
            att_prefetch(g, KD, 2)
            g.e(f"{l}:")
    if g.opt.get("bst"):
        g.e(f"s_waitcnt lgkmcnt(0)\nv_writelane_b32 v40, s92, 23\nv_writelane_b32 v41, s94, 23")
    l_have = g.label("have")
    if early:
        g.e(f"s_cmp_eq_u32 s{sT4}, 1\ns_cbranch_scc1 {l_have}")
    g.e("s_waitcnt vmcnt(0)")
    nonce_check(g, 12, 13)
    g.e("s_nop 0")
    spin_check(g, poll, "fkv")
    att_prefetch(g, KD, 2)
    g.e(f"{l_have}:")
    if g.opt.get("bst"):
        g.e(f"""s_memtime s[92:93]
        s_memrealtime s[94:95]
        s_waitcnt lgkmcnt(0)
        v_writelane_b32 v40, s92, 24
        v_writelane_b32 v41, s94, 24
        s_lshl_b32 s{sT0}, s2, 2
        s_add_u32 s{sT0}, s{sT0}, s{sHD}
        s_lshl_b32 s{sT0}, s{sT0}, 9
        s_add_u32 s{sT0}, s{sT0}, {WS_DIAG + 0x40000}
        v_lshlrev_b32 v1, 2, v{A_LANE}
        buffer_store_dword v40, v1, {srd(SRD_WS)}, s{sT0} offen
        buffer_store_dword v41, v1, {srd(SRD_WS)}, s{sT0} offen offset:256
        s_waitcnt vmcnt(0)""")
    g.stamp(4)
    zero_o(g)
    g.e("s_barrier")
    g.e("s_branch L_attn")


def att_const_setup(g):
    g.e(f"""v_lshlrev_b32 v{A_VK}, 4, v{A_LANE}
    v_lshrrev_b32 v1, 5, v{A_LANE}
    v_and_b32 v2, 15, v{A_LANE}
    v_lshlrev_b32 v1, 8, v1
    v_lshl_add_u32 v1, v2, 4, v1
    v_add_u32 v{A_VV}, 1024, v1
    v_mov_b32 v{A_IDX}, 0xdddd
    s_mov_b32 s{sVMASK}, 0xffff
    s_mov_b32 s{sVMASK+1}, 0xffff
    s_mov_b32 s{sHMASK}, 0xffff0000
    s_mov_b32 s{sHMASK+1}, 0xffff0000
    s_mov_b32 s{sRETRY}, 0
    s_lshl_b32 s{sT0}, s{sQUAD}, 2
    s_add_u32 s{sT0}, s{sT0}, s{sHD}
    s_mul_i32 s{sKVB}, s{sT0}, {HEAD_STRIDE}
    s_lshl_b32 s{sT1}, s{sKH}, 16
    s_add_u32 s{sKVB}, s{sKVB}, s{sT1}
    s_lshl_b32 s{sTILE}, s{sRB}, 1
    s_add_u32 s{sTILE}, s{sTILE}, s{sKH}""")
    g.e("\n".join(quad_off(g, sQKB, "kb")))
    if g.opt.get("omap", 1):
        g.e(f"""s_and_b32 s{sOT}, s2, 7
        s_lshl_b32 s{sOT}, s{sOT}, 2
        s_lshr_b32 s{sT0}, s2, 6
        s_add_u32 s{sOT}, s{sOT}, s{sT0}
        s_lshl_b32 s{sOT}, s{sOT}, 1
        s_add_u32 s{sOT}, s{sOT}, s{sKH}
        s_bfe_u32 s{sOC}, s2, 0x30003""")
    else:
        g.e(f"s_mov_b32 s{sOT}, s{sTILE}\ns_mov_b32 s{sOC}, s{sQUAD}")
    if WS_KV:
        g.e(f"s_add_u32 s{sKVB}, s{sKVB}, {WS_KV}")
    if g.opt.get("krot", 1):
        nk = g.opt.get("nkrot", 16)
        g.e(f"s_and_b32 s{sKROT}, s{sRB}, {nk-1}\ns_mul_i32 s{sKROT}, s{sKROT}, {65536//nk}")
    else:
        g.e(f"s_mov_b32 s{sKROT}, 0")
    g.e(f"""v_and_b32 v1, 27, v{A_LANE}
    v_cmp_eq_u32 vcc, 16, v1
    v_mov_b32 v2, 0
    v_mov_b32 v3, 0x3f803f80
    v_cndmask_b32 v1, v2, v3, vcc""")
    g.e(f"v_mov_b32 v{A_V0}, v1\nv_mov_b32 v{A_V0+1}, v1")
    for i in range(2, 8 * KD, 2):
        g.e(f"v_mov_b64 {vr(A_V0+i,2)}, {vr(A_V0,2)}")
    g.e(f"""v_lshrrev_b32 v1, 3, v{A_LANE}
    v_and_b32 v2, 7, v{A_LANE}
    v_bfe_u32 v3, v{A_LANE}, 4, 1
    v_lshlrev_b32 v3, 2, v3
    v_xor_b32 v3, v3, v2
    v_lshlrev_b32 v3, 4, v3
    v_lshl_add_u32 v{A_VO}, v1, 10, v3""")


def kv_group(g, kt, kd, first=False, v1only=False):
    g.e(f"s_mov_b64 exec, {sp(sVMASK)}")
    if not first:
        g.e(f"buffer_load_dwordx4 {vr(A_V1+4*((kt-1)%kd),4)}, v{A_VV}, {srd(SRD_WS)}, s{sKVS} offen offset:512 sc1")
        if v1only:
            g.e("s_mov_b64 exec, -1")
            return 1
        g.e(f"""s_add_u32 s{sKVO}, s{sKVO}, 2048
        s_and_b32 s{sKVO}, s{sKVO}, 0xffff
        s_add_u32 s{sKVS}, s{sKVO}, s{sKVB}""")
    g.e(f"""buffer_load_dwordx4 {vr(A_V0+4*(kt%kd),4)}, v{A_VV}, {srd(SRD_WS)}, s{sKVS} offen sc1
    s_mov_b64 exec, -1
    buffer_load_dwordx4 {vr(A_K+4*(kt%kd),4)}, v{A_VK}, {srd(SRD_WS)}, s{sKVS} offen sc1""")
    return 2 if first else 3


def att_prefetch(g, kd, n):
    g.e(f"s_mov_b32 s{sKVO}, s{sKROT}\ns_add_u32 s{sKVS}, s{sKVO}, s{sKVB}")
    for t in range(n):
        kv_group(g, t, kd, first=(t == 0))


PHI_T, PHI_C = 176, 14


def phi_block(g, src, n):
    T = PHI_T
    for b in range(0, n, 8):
        for j in range(0, 8, 2):
            g.e(f"v_pk_fma_f32 {vr(T+j,2)}, {vr(src+b+j,2)}, {sp(sC1)}, {vr(PHI_C,2)}")
        for j in range(8):
            g.e(f"v_exp_f32_e64 v{T+j}, v{T+j} clamp")
        for j in range(8):
            g.e(f"v_max_f32 v{src+b+j}, s{sC3}, v{src+b+j}")
        for j in range(0, 8, 2):
            g.e(f"v_pk_add_f32 {vr(src+b+j,2)}, {vr(T+j,2)}, {vr(src+b+j,2)}")


def cvt_list(dst, src, n):
    return [f"v_cvt_pk_bf16_f32 v{dst+j}, v{src+2*j}, v{src+2*j+1}" for j in range(n // 2)]


def cvt_block(g, dst, src, n):
    g.e("\n".join(cvt_list(dst, src, n)))


def compute(g, var):
    aX, aW0, aW1, vST = 4, 8, 9, 10
    SET = (16, 64)
    ACC1 = 112
    phi_ty = 0 if var == 0 else 1
    ACC2 = {(phi_ty, 0): 144, (phi_ty, 1): 160, (1 - phi_ty, 0): 48, (1 - phi_ty, 1): 96}

    def wa(slot):
        return (aW1, 0) if slot == 4 else (aW0, slot * 16384)

    def reads(c):
        reg, off = wa(c % 5)
        o = []
        if c < 8:
            for s in range(4):
                b = SET[c & 1] + 12 * s
                wo = off + var * 8192 + s * 2048
                o += [f"ds_read_b128 {vr(b,4)}, v{aX+s} offset:{L_X + c*8192}",
                      f"ds_read_b64_tr_b16 {vr(b+8,2)}, v{reg} offset:{wo}",
                      f"ds_read_b64_tr_b16 {vr(b+10,2)}, v{reg} offset:{wo+512}",
                      f"ds_read_b128 {vr(b+4,4)}, v{aX+s} offset:{L_X + c*8192 + 4096}"]
        else:
            p = (c - 8) >> 1
            for s in range(2):
                b = SET[c & 1] + 16 * s
                xs = ((c - 8) & 1) * 2 + s
                w0, w1 = off + 2 * var * 4096 + s * 2048, off + (2 * var + 1) * 4096 + s * 2048
                o += [f"ds_read_b128 {vr(b,4)}, v{aX+xs} offset:{L_X + p*8192}",
                      f"ds_read_b64_tr_b16 {vr(b+8,2)}, v{reg} offset:{w0}",
                      f"ds_read_b64_tr_b16 {vr(b+10,2)}, v{reg} offset:{w0+512}",
                      f"ds_read_b128 {vr(b+4,4)}, v{aX+xs} offset:{L_X + p*8192 + 4096}",
                      f"ds_read_b64_tr_b16 {vr(b+12,2)}, v{reg} offset:{w1}",
                      f"ds_read_b64_tr_b16 {vr(b+14,2)}, v{reg} offset:{w1+512}"]
        return o

    def mfmas(c):
        if c < 0:
            return []
        o = []
        ct_orient = (var == 0) if c < 8 else (var == 1)
        if c < 8:
            items = [(s, 0, tt, SET[c & 1] + 12 * s) for s in range(4) for tt in range(2)]
        else:
            items = [(s, ty, tt, SET[c & 1] + 16 * s) for s in range(2) for ty in range(2) for tt in range(2)]
            if c == 23:
                items.sort(key=lambda x: x[1])
        for s, ty, tt, b in items:
            acc = (ACC1 + 16 * tt) if c < 8 else ACC2[(ty, tt)]
            X, W = vr(b + 4 * tt, 4), vr(b + 8 + 4 * ty, 4)
            A, B = (W, X) if ct_orient else (X, W)
            zero = s == 0 and (c == 0 or (c == 8 and ty != phi_ty))
            if g.opt.get("fake16"):
                q = 8 * (s & 1)
                o.append(f"v_mfma_f32_16x16x32_bf16 {vr(acc+q,4)}, {A}, {B}, {vr(acc+q,4)}\n"
                         f"v_mfma_f32_16x16x32_bf16 {vr(acc+q+4,4)}, {B}, {A}, {vr(acc+q+4,4)}")
                continue
            o.append(f"v_mfma_f32_32x32x16_bf16 {vr(acc,16)}, {A}, {B}, {'0' if zero else vr(acc,16)}")
        return o

    GF, GA, aG, aGb = 176, 184, 0, 11

    def gate_reads(c):
        return [f"s_add_u32 s{sT0}, s{sROT}, {c}", f"s_and_b32 s{sT0}, s{sT0}, 7", f"s_lshl_b32 s{sT0}, s{sT0}, 7",
                f"v_add_u32 v{aG}, s{sT0}, v{aGb}", f"s_mov_b64 exec, {sp(sGM)}",
                f"ds_read_b128 {vr(GF,4)}, v{aG}", f"ds_read_b128 {vr(GF+4,4)}, v{aG} offset:32", "s_mov_b64 exec, -1"]

    def gate_mfmas(c):
        return [f"v_mfma_f32_16x16x32_bf16 {vr(GA+4*tt,4)}, {vr(GF+4*k,4)}, "
                f"{vr(SET[c & 1] + 12*(2*var+k) + 4*tt,4)}, {vr(GA+4*tt,4)}" for k in range(2) for tt in range(2)]

    def gate_park():
        return [f"v_mov_b32 v0, v{GA}", f"v_mov_b32 v11, v{GA+1}", f"v_mov_b32 v2, v{GA+4}", f"v_mov_b32 v3, v{GA+5}"]

    def gate_write():
        return [f"v_lshlrev_b32 v4, 2, v{A_LANE}", f"v_add_u32 v4, {L_GP + 256*var}, v4", "s_mov_b64 exec, 0xffff",
                "ds_write_b32 v4, v0", "ds_write_b32 v4, v11 offset:64",
                "ds_write_b32 v4, v2 offset:128", "ds_write_b32 v4, v3 offset:192", "s_mov_b64 exec, -1"]

    prefetch_touch(g, var, 0)
    srd_words(g, SRD_SIZES)
    x_read_addrs(g, aX)
    g.e(f"""v_bfe_u32 v1, v{A_LANE}, 2, 2
    v_lshrrev_b32 v2, 5, v{A_LANE}
    v_lshl_add_u32 v1, v2, 3, v1
    v_lshlrev_b32 v{aW0}, 7, v1
    v_bfe_u32 v1, v{A_LANE}, 3, 1
    s_and_b32 s{sT0}, s{sWAVE}, 1
    v_xor_b32 v1, s{sT0}, v1
    v_bfe_u32 v2, v{A_LANE}, 4, 1
    v_lshl_add_u32 v1, v1, 1, v2
    v_lshlrev_b32 v1, 5, v1
    v_and_b32 v2, 3, v{A_LANE}
    v_lshl_add_u32 v1, v2, 3, v1
    v_add_u32 v{aW0}, v{aW0}, v1
    v_add_u32 v{aW0}, {L_RING}, v{aW0}
    v_add_u32 v{aW1}, 65536, v{aW0}""")
    if var == 0:
        g.e(f"""v_and_b32 v1, 0x33, v{A_LANE}
        v_bfe_u32 v2, v{A_LANE}, 2, 1
        v_lshl_or_b32 v1, v2, 3, v1
        v_bfe_u32 v2, v{A_LANE}, 3, 1
        v_lshl_or_b32 v1, v2, 2, v1
        v_lshlrev_b32 v{vST}, 4, v1""")
    else:
        g.e(f"""v_bfe_u32 v1, v{A_LANE}, 4, 1
        v_mul_u32_u24 v1, {HEAD_STRIDE}, v1
        v_lshrrev_b32 v2, 5, v{A_LANE}
        v_lshl_add_u32 v1, v2, 8, v1
        v_and_b32 v2, 15, v{A_LANE}
        v_lshl_add_u32 v1, v2, 4, v1
        v_add_u32 v{vST}, 1024, v1""")
    g.e(f"v_mov_b32 v144, {f32(1e-6)}\nv_mov_b32 v145, v144")
    for i in range(2, 32, 2):
        g.e(f"v_mov_b64 {vr(144+i,2)}, v[144:145]")
    g.e(f"""s_mov_b32 s{sGM}, 0x20001
    s_mov_b32 s{sGM+1}, 0x20001
    v_lshrrev_b32 v{aGb}, 5, v{A_LANE}
    v_lshlrev_b32 v{aGb}, 4, v{aGb}
    v_add_u32 v{aGb}, {L_GATE + 64*var}, v{aGb}""")
    g.e(f"""s_mov_b32 s{sC1}, {f32(LOG2E)}
    s_mov_b32 s{sC1+1}, {f32(LOG2E)}
    s_mov_b32 s{sC2}, {f32(0.25*LOG2E)}
    s_mov_b32 s{sC2+1}, {f32(0.25*LOG2E)}
    s_mov_b32 s{sC3}, {f32(1e-6)}
    v_mov_b32 v{PHI_C}, {f32(-1e-6*LOG2E)}
    v_mov_b32 v{PHI_C+1}, {f32(-1e-6*LOG2E)}
    v_lshlrev_b32 v{A_VK}, 4, v{A_LANE}""")
    g.e("s_waitcnt lgkmcnt(0)")
    for i in range(0, 16, 2):
        g.e(f"v_mov_b64 {vr(GF+i,2)}, 0")
    if g.opt.get("diag"):
        g.e(f"s_mov_b32 s{sST0}, s{sSTAMP}")
    l = g.label("st")
    g.e("v_mov_b32 v13, 0\nv_mov_b32 v12, 0")
    if var == 0:
        g.e(f"""s_cmp_eq_u32 s{sWAVE}, 0
        s_cbranch_scc0 {l}
        v_mov_b32 v2, 0
        v_mov_b32 v3, {L_BAD}
        ds_write_b32 v3, v2
        ds_write_b32 v3, v2 offset:4
        ds_write_b32 v3, v2 offset:8
        ds_write_b32 v3, v2 offset:12
        s_cmp_eq_u32 s2, 0
        s_cbranch_scc0 {l}
        s_memrealtime {sp(sP)}
        s_waitcnt lgkmcnt(0)
        s_or_b32 s{sP}, s{sP}, 1
        v_mov_b32 v1, s{sP}
        buffer_store_dword v1, v2, {srd(SRD_DBG)}, 0 offen sc1
        {l}:""")
    else:
        g.e(f"""s_cmp_eq_u32 s{sWAVE}, 3
        s_cbranch_scc0 {l}
        s_cmp_lt_u32 s{sRB}, 4
        s_cbranch_scc0 {l}
        {chr(10).join(quad_off(g, sT0, "zero"))}
        s_lshl_b32 s{sT0}, s{sT0}, 2
        s_add_u32 s{sT0}, s{sT0}, s{sRB}
        s_mul_i32 s{sT0}, s{sT0}, {HS}
        s_add_u32 s{sT0}, s{sT0}, {WS_P}
        s_add_u32 s{sT1}, s{sT0}, {8*JS}
        v_and_b32 v20, 0x70, v{A_VK}
        v_lshrrev_b32 v21, 3, v{A_LANE}
        v_mul_u32_u24 v21, {JS}, v21
        v_add_u32 v21, v21, v20
        v_mov_b32 v16, 0
        v_mov_b32 v17, 0
        v_mov_b32 v18, 0
        v_mov_b32 v19, 0
        buffer_store_dwordx4 v[16:19], v21, {srd(SRD_WS)}, s{sT0} offen sc1
        buffer_store_dwordx4 v[16:19], v20, {srd(SRD_WS)}, s{sT1} offen sc1
        {l}:""")
    g.stamp(1)

    if g.opt.get("cprio", 1):
        g.e("s_setprio 1")
    flagc = g.opt.get("flagc", 14)
    carry = []
    for c in range(24):
        if c == flagc:
            g.e("s_waitcnt vmcnt(0)")
            nonce_check(g, 12, 13)
        g.e("s_barrier")
        if c == 0:
            g.stamp(2)
        if g.opt.get("kst") and c in g.opt["kst"]:
            i = g.opt["kst"].index(c)
            g.cstamp(8 + 2 * i)
            g.stamp(9 + 2 * i)
        rd = reads(c)
        m = mfmas(c - 1)
        extra = []
        eper = g.opt.get("eper", 4)
        e0 = g.opt.get("e0", 9)
        if e0 <= c < e0 + 4 // eper:
            extra = sum(epilogue_a(g, var, ACC1, vST)[(c - e0) * eper:(c - e0 + 1) * eper], [])
        seq = list(carry)
        if 1 <= c <= 8:
            seq += gate_mfmas(c - 1)
        if c == 9:
            seq += gate_park()
        per = (len(rd) + 3) // 4
        for i in range(7):
            if i == 4 and c < 8:
                seq += gate_reads(c)
            if i < 4:
                seq += rd[i * per:(i + 1) * per]
            if i < len(m):
                seq.append(m[i])
            if extra and i >= 3:
                k = (len(extra) + 3) // 4
                seq += extra[(i - 3) * k:(i - 2) * k]
        carry = m[7:8]
        g.e("\n".join(seq))
        if c == 0:
            att_const_setup(g)
        if c == 9:
            g.stamp(3)
        if c == g.opt.get("tper", 4):
            prefetch_touch(g, var, 1)
        if c == g.opt.get("noncec", 8):
            g.e(f"buffer_load_dword v12, v13, {srd(SRD_DBG)}, 0 offen sc1")
        if c == flagc and var == 0:
            l = g.label("kf")
            g.e(f"""s_cmp_eq_u32 s{sWAVE}, 0
            s_cbranch_scc0 {l}
            s_lshl_b32 s{sT0}, s{sQUAD}, 5
            s_add_u32 s{sT0}, s{sT0}, s{sRB}
            s_lshl_b32 s{sT0}, s{sT0}, 7
            s_add_u32 s{sT0}, s{sT0}, {WS_FKV}
            s_mov_b64 exec, 1
            buffer_store_dword v12, v13, {srd(SRD_WS)}, s{sT0} offen sc1
            s_mov_b64 exec, -1
            {l}:""")
        g.e("s_waitcnt lgkmcnt(0)")
    g.e("\n".join(carry + mfmas(23)[:3]))
    g.stamp(4)
    g.e(f"s_barrier\ns_setprio {g.opt.get('eprio', 0)}")
    rest = mfmas(23)[3:]
    if var == 0:
        g.e("\n".join(rest[:1] + gate_write() + rest[1:]))
        epilogue_b(g, var, ACC2, [])
    else:
        g.e("\n".join(rest[:1] + gate_write() + rest[1:2]))
        epilogue_b(g, var, ACC2, rest[2:])
    if var == 0:
        g.e("s_branch L_attn")


def prefetch_touch(g, var, when):
    mask = g.opt.get("touch", 1)
    l = g.label("pt")
    if var == 0 and when == 0 and mask & 1:
        g.e(f"""s_getpc_b64 {sp(sP)}
        L_pc:
        s_sub_u32 s{sP}, s{sP}, L_pc-{KNAME}
        s_subb_u32 s{sP+1}, s{sP+1}, 0
        s_lshr_b32 s{sT0}, s2, 3
        s_lshl_b32 s{sT1}, s{sWAVE}, 5
        s_add_u32 s{sT0}, s{sT0}, s{sT1}
        s_lshl_b32 s{sT0}, s{sT0}, 10
        v_and_b32 v2, 7, v{A_LANE}
        v_lshl_add_u32 v2, v2, 7, s{sT0}
        v_min_u32 v2, L_codeend-{KNAME}-4, v2
        global_load_dword v{A_POLL}, v2, {sp(sP)}""")
    if var == 1 and when == 1 and mask & 2:
        nsh = 8 if g.opt.get("map") == 1 else 16
        rows = 512 // nsh
        sc = g.opt.get("tsc", "sc1")
        l3 = g.label("pt3")
        g.e(f"""s_and_b32 s{sT0}, s{sRB}, {nsh-1}
        s_mul_i32 s{sT0}, s{sT0}, {rows*3072}
        s_lshl_b32 s{sT1}, s{sQUAD}, 7
        s_add_u32 s{sT1}, s{sT1}, s{sT0}
        v_and_b32 v2, 31, v{A_LANE}
        v_mul_u32_u24 v2, 3072, v2
        s_cmp_eq_u32 s{sWAVE}, 2
        s_cbranch_scc0 {l3}
        v_lshrrev_b32 v3, 5, v{A_LANE}
        v_lshl_add_u32 v2, v3, 10, v2""")
        for r in range(rows // 32):
            g.e(f"buffer_load_dword v1, v2, {srd(SRD_WB)}, s{sT1} offen {sc}\ns_add_u32 s{sT1}, s{sT1}, {32*3072}")
        g.e(f"s_branch {l}\n{l3}:\ns_mov_b64 exec, 0xffffffff")
        for r in range(rows // 32):
            g.e(f"""buffer_load_dword v1, v2, {srd(SRD_WB)}, s{sT1} offen offset:2048 {sc}
            buffer_load_dword v1, v2, {srd(SRD_WA)}, s{sT1} offen {sc}
            s_add_u32 s{sT1}, s{sT1}, {32*3072}""")
        g.e(f"s_mov_b64 exec, -1\n{l}:")


def epilogue_a(g, var, ACC1, vST):
    T = 176
    o = quad_off(g, sT0, "v" if var else "k") + [f"s_lshl_b32 s{sT0}, s{sT0}, 2", f"s_and_b32 s{sT1}, s{sWAVE}, 1", f"s_lshl_b32 s{sT1}, s{sT1}, 1",
         f"s_add_u32 s{sT0}, s{sT0}, s{sT1}", f"s_mul_i32 s{sT0}, s{sT0}, {HEAD_STRIDE}",
         f"s_lshl_b32 s{sT1}, s{sRB}, 12", f"s_add_u32 s{sT0}, s{sT0}, s{sT1}"]
    if WS_KV:
        o.append(f"s_add_u32 s{sT0}, s{sT0}, {WS_KV}")
    o.append(f"s_add_u32 s{sT1}, s{sT0}, {HEAD_STRIDE}")
    o += [f"s_mov_b32 s{sT4}, s{sT0}", f"s_mov_b32 s{sT5}, s{sT1}"]
    parts = []
    for tt in range(2):
        for hlf in range(2):
            if tt or hlf:
                parts.append(o)
                o = []
            d = T + 8 * tt + 4 * hlf
            if var == 0:
                a = ACC1 + 16 * tt + 8 * hlf
                o += [f"v_mul_f32 v{a+i}, s{sC2}, v{a+i}" for i in range(8)]
            o += cvt_list(d, ACC1 + 16 * tt + 8 * hlf, 8)
            if var == 0:
                o.append(f"buffer_store_dwordx4 {vr(d,4)}, v{vST}, {srd(SRD_WS)}, s{sT4+hlf} offen offset:{tt*2048} sc1")
            else:
                o.append(f"buffer_store_dwordx4 {vr(d,4)}, v{vST}, {srd(SRD_WS)}, s{sT4} offen offset:{tt*2048+hlf*512} sc1")
    return parts + [o]


def epilogue_b(g, var, ACC2, rest):
    if var == 1:
        g.e(f"""s_and_b32 s{sT0}, s{sWAVE}, 1
        s_lshl_b32 s{sT0}, s{sT0}, 12
        s_add_u32 s{sT0}, s{sT0}, {L_STASH}
        v_add_u32 v3, s{sT0}, v{A_VK}
        s_nop 1""")
        for ty in range(2):
            for tt in range(2):
                a = ACC2[(ty, tt)]
                if ty == 1:
                    phi_block(g, a, 16)
                d = 16 + 16 * ty + 8 * tt
                for i in range(2):
                    cvt_block(g, d + 4 * i, a + 8 * i, 8)
                    g.e(f"ds_write_b128 v3, {vr(d+4*i,4)} offset:{ty*8192 + (i*2+tt)*1024}")
                    if rest:
                        g.e(rest.pop(0))
            lds_count(g, L_PQC if ty else L_QC)
            if ty == 0:
                att_prefetch(g, KD, 2)
        zero_o(g)
    else:
        att_prefetch(g, KD, 2)
        PK, VF, ONE, D, Z = 16, 32, 140, 64, 80
        for tt in range(2):
            cvt_block(g, VF + 8 * tt, ACC2[(1, tt)], 16)
        for i in range(4):
            g.e(f"v_mov_b32 v{ONE+i}, 0x3f803f80")
        for tt in range(2):
            phi_block(g, ACC2[(0, tt)], 16)
            cvt_block(g, PK + 8 * tt, ACC2[(0, tt)], 16)
            g.e("s_nop 1")
            for blk in range(2):
                k = 2 * tt + blk
                cD = "0" if k == 0 else vr(D, 16)
                cZ = "0" if k == 0 else vr(Z, 16)
                g.e(f"v_mfma_f32_32x32x16_bf16 {vr(D,16)}, {vr(PK+4*k,4)}, {vr(VF+4*k,4)}, {cD}")
                g.e(f"v_mfma_f32_32x32x16_bf16 {vr(Z,16)}, {vr(ONE,4)}, {vr(PK+4*k,4)}, {cZ}")
        g.e("s_nop 10")
        for j in range(8):
            g.e(f"v_cndmask_b32 v{A_ATD+j}, v{D+j}, v{D+8+j}, {sp(sHMASK)}")
        g.e(f"v_mov_b32 v{A_ATD+8}, v{Z}")
        zero_o(g)
        lds_count(g, L_PQC)


def att_step(g, t, kd, useC, hi=None, skip0=False):
    p, q, r = t % kd, (t + 1) % kd, (t - 1) % kd
    SA, SB = A_SA, A_SB
    ca, cb = (vr(A_CA, 16), vr(A_CB, 16)) if useC else ("0", "0")

    def ex(b, i0, i1):
        for i in range(i0, i1):
            g.e(f"v_exp_f32 v{b+i}, v{b+i}")

    def sm(o, v, s):
        g.e(f"v_smfmac_f32_32x32x32_bf16 {vr(o,16)}, {vr(v,4)}, {vr(s,8)}, v{A_IDX}")

    g.e("s_setprio 1")
    ex(SA, 0, 1)
    g.e("s_setprio 2")
    ex(SA, 1, 2)
    if not skip0:
        sm(A_OB, A_V1 + 4 * r, SB + 8)
    ex(SA, 2, 5)
    g.e(f"v_mfma_f32_32x32x16_bf16 {vr(SB,16)}, {vr(A_K+4*p,4)}, {vr(A_Q+4,4)}, {cb}")
    ex(SA, 5, 10)
    sm(A_OA, A_V0 + 4 * p, SA)
    ex(SA, 10, 16)
    ex(SB, 0, 2)
    sm(A_OA, A_V1 + 4 * p, SA + 8)
    ex(SB, 2, 5)
    g.e(f"v_mfma_f32_32x32x16_bf16 {vr(SA,16)}, {vr(A_K+4*q,4)}, {vr(A_Q,4)}, {ca}")
    ex(SB, 5, 10)
    sm(A_OB, A_V0 + 4 * p, SB)
    ex(SB, 10, 16)
    if hi:
        g.e(f"s_setprio {g.opt.get('hprio', 3)}")
        hi()
    g.e("s_setprio 0")


def wo_dma(g, n):
    if n == 0:
        g.e(f"""s_lshl_b32 s{sWOM}, s{sWAVE}, 13
        s_lshl_b32 s{sWOS}, s{sWAVE}, 16
        s_lshl_b32 s{sT1}, s{sOC}, 7
        s_add_u32 s{sWOS}, s{sWOS}, s{sT1}
        s_mov_b32 s{SRD_W2+2}, 0x80000""")
    rot = (f"s_and_b32 s{sT0}, s{sOT}, 6\ns_lshl_b32 s{sT0}, s{sT0}, 1" if g.opt.get("omap", 1) else
           f"s_lshl_b32 s{sT0}, s{sRB}, {1 if g.opt.get('map') == 1 else 0}")
    g.e(f"""{rot}
    s_add_u32 s{sT0}, s{sT0}, {n}
    s_and_b32 s{sT1}, s{sT0}, 7
    s_bitcmp1_b32 s{sT0}, 3
    s_cselect_b32 s{SRD_W2}, s{SRD_OA}, s{SRD_OB}
    s_cselect_b32 s{SRD_W2+1}, s{SRD_OA+1}, s{SRD_OB+1}
    s_cselect_b32 s{sT0}, {L_WOA}, {L_WOB}
    s_add_u32 s{sT0}, s{sT0}, s{sWOM}
    s_lshl_b32 s{sT2}, s{sT1}, 10
    s_add_u32 m0, s{sT0}, s{sT2}
    s_lshl_b32 s{sT1}, s{sT1}, 13
    s_add_u32 s{sT1}, s{sT1}, s{sWOS}
""")
    if g.opt.get("wom") == 1:
        return
    g.e(f"buffer_load_dwordx4 v{A_VO}, {srd(SRD_W2)}, s{sT1} offen lds")
    g.vm_issue("wo")


def o_store_addr(g, base, dst):
    g.e(f"""s_and_b32 s{sT0}, s{sTILE}, 7
    s_xor_b32 s{sT0}, s{sT0}, s{sQUAD}
    s_lshl_b32 s{sT0}, s{sT0}, 2
    s_add_u32 s{sT0}, s{sT0}, s{sHD}
    s_lshl_b32 s{sT0}, s{sT0}, 10
    s_lshl_b32 s{dst}, s{sTILE}, 15
    s_add_u32 s{dst}, s{dst}, s{sT0}
    s_add_u32 s{dst}, s{dst}, {base}""")


def o_flag_store(g, base):
    g.e(f"""s_lshl_b32 s{sT0}, s{sTILE}, 3
    s_add_u32 s{sT0}, s{sT0}, s{sQUAD}
    s_lshl_b32 s{sT0}, s{sT0}, 7
    s_lshl_b32 s{sT1}, s{sHD}, 2
    s_add_u32 s{sT0}, s{sT0}, s{sT1}
    s_add_u32 s{sT0}, s{sT0}, {base}
    s_mov_b64 exec, 1
    buffer_store_dword v{A_NV}, v{A_ZV}, {srd(SRD_WS)}, s{sT0} offen sc1
    s_mov_b64 exec, -1""")


def o_poll_addr(g):
    g.e(f"""v_min_u32 v{A_T}, 7, v{A_LANE}
    v_lshrrev_b32 v{A_T+1}, 2, v{A_T}
    v_and_b32 v{A_T}, 3, v{A_T}
    v_lshlrev_b32 v{A_T}, 2, v{A_T}
    v_lshl_add_u32 v{A_PA}, v{A_T+1}, 7, v{A_T}
    s_lshl_b32 s{sT0}, s{sOT}, 3
    s_lshl_b32 s{sT1}, s{sHD}, 1
    s_add_u32 s{sT0}, s{sT0}, s{sT1}
    s_lshl_b32 s{sT0}, s{sT0}, 7
    v_add_u32 v{A_PA}, s{sT0}, v{A_PA}""")


def o_frag_addr(g, base):
    for u in range(2):
        g.e(f"""s_lshl_b32 s{sT0}, s{sHD}, 1
        s_add_u32 s{sT0}, s{sT0}, {u}
        s_and_b32 s{sT1}, s{sOT}, 7
        s_xor_b32 s{sT0}, s{sT0}, s{sT1}
        s_lshl_b32 s{sT0}, s{sT0}, 12
        s_lshl_b32 s{sT1}, s{sOT}, 15
        s_add_u32 s{sT0}, s{sT0}, s{sT1}
        s_add_u32 s{sT4+u}, s{sT0}, {base}""")


def o_frag_load(g, dst, i):
    g.e(f"buffer_load_dwordx4 {vr(dst+4*i,4)}, v{A_VK}, {srd(SRD_WS)}, s{sT4+(i>>2)} offen offset:{(i&3)*1024} sc1")


def hooks(g):
    fp_poll = f"buffer_load_dword v{A_POLL}, v{A_PA}, {srd(SRD_WS)}, 0 offen sc1"
    fob_poll = f"buffer_load_dword v{A_POLL}, v{A_PA}, {srd(SRD_WS)}, s{sAT} offen sc1"
    H, L = {}, {}

    skip = g.opt.get("skip", "").split("+")

    def at(d, t, f, name=None):
        assert 0 <= t <= 30, t
        if (name or getattr(f, "__name__", "")) not in skip:
            d.setdefault(t, []).append(f)
    ta = g.opt.get("ta", 3)
    tf = g.opt.get("tf", 10)
    tp = g.opt.get("tp", 13)
    tb = g.opt.get("tb", 25)
    tw = g.opt.get("tw", 6)

    wper = g.opt.get("wper", 1)
    for n in range(16):
        wb = g.opt.get("wbunch", 1)
        at(L, tw + max(0, n - wb + 1) // wper, lambda n=n: wo_dma(g, n), 'wo')

    def atomics(part):
        l0, l1 = g.label("at"), g.label("atj")
        if part == 0:
            g.e(f"""s_lshl_b32 s{sAT}, s{sQKB}, 1
            s_add_u32 s{sAT}, s{sAT}, s{sWAVE}
            s_mul_i32 s{sAT}, s{sAT}, {2*HS}
            s_add_u32 s{sAT}, s{sAT}, {WS_P}""")
        g.e(f"s_cmp_lt_u32 s{sWAVE}, {0 if g.opt.get('atm') == 1 else 2}\ns_cbranch_scc0 {l0}")
        for j in range(aper * part, aper * part + aper):
            if j < 8:
                g.e(f"s_add_u32 s{sT0}, s{sAT}, {j*JS}\nbuffer_atomic_add_f32 v{A_ATD+j}, v{A_ATA+1}, {srd(SRD_WS)}, s{sT0} offen")
            else:
                g.e(f"""s_mov_b64 exec, 0xffffffff
                s_add_u32 s{sT0}, s{sAT}, {8*JS}
                buffer_atomic_add_f32 v{A_ATD+8}, v{A_ATA}, {srd(SRD_WS)}, s{sT0} offen""")
        if g.opt.get("atlat"):
            g.stamp(9)
            g.e("s_waitcnt vmcnt(0)")
            g.stamp(10)
        g.e(f"s_branch {l1}\n{l0}:\ns_mov_b64 exec, 1")
        for j in range(aper if g.opt.get('atm') != 2 else 0):
            g.e(f"buffer_load_dword v0, v{A_PA}, {srd(SRD_WS)}, 0 offen")
        g.e(f"{l1}:\ns_mov_b64 exec, -1")
        g.vm_issue("atom", aper, g.opt.get('atm') == 2)
    aper = g.opt.get("aper", 9)
    for i in range(9 // aper):
        at(L, ta + i, lambda i=i: atomics(i), 'atomics')

    def poison():
        o_store_addr(g, WS_OA, sT2)
        g.e(f"buffer_store_dwordx4 {vr(A_DN,4)}, v{A_VK}, {srd(SRD_WS)}, s{sT2} offen sc1")
        g.vm_issue("poison")
    at(L, tf + 1, poison)

    def fp_flag():
        g.vm_wait("atom")
        g.vm_issue("fp", 1, True)
        l = g.label("fp")
        g.e(f"""s_cmp_lt_u32 s{sWAVE}, 2
        s_cbranch_scc0 {l}
        s_lshl_b32 s{sT0}, s{sQKB}, 1
        s_add_u32 s{sT0}, s{sT0}, s{sWAVE}
        s_lshl_b32 s{sT0}, s{sT0}, 5
        s_add_u32 s{sT0}, s{sT0}, s{sRB}
        s_lshl_b32 s{sT0}, s{sT0}, 7
        s_add_u32 s{sT0}, s{sT0}, {WS_FP}
        s_mov_b64 exec, 1
        buffer_store_dword v{A_NV}, v{A_ZV}, {srd(SRD_WS)}, s{sT0} offen sc1
        s_mov_b64 exec, -1
        {l}:""")
    at(L, tf, fp_flag)

    def fp_poll_issue():
        g.e(f"{fp_poll}\nds_read_b32 v{A_T}, v{A_T+1}")
        g.vm_issue("fppoll")
    at(L, tp, fp_poll_issue)

    def fp_check():
        lds_wait(g, A_T + 1, A_T, 4, "pq")
        g.vm_wait("fppoll")
        spin_check(g, fp_poll, "fpw")
    at(H, tp + 2, fp_check)

    def kv_loads(part):
        if part == 0:
            g.e(f"""ds_read_b128 {vr(A_PQ,4)}, v{A_T+2} offset:8192
            ds_read_b32 v{A_G}, v{A_T+3}
            ds_read_b32 v{A_G1}, v{A_T+3} offset:256
            s_lshl_b32 s{sAT}, s{sQUAD}, 2
            s_add_u32 s{sAT}, s{sAT}, s{sHD}
            s_mul_i32 s{sAT}, s{sAT}, {HS}
            s_add_u32 s{sAT}, s{sAT}, {WS_P}""")
        g.e(f"s_mov_b64 exec, {sp(sVMASK)}")
        js = ((0, 1, 2), (3, 4, 5, 6), (7,))[part]
        for j in js:
            g.e(f"s_add_u32 s{sT0}, s{sAT}, {j*JS}\nbuffer_load_dword v{A_KVL+j}, v{A_KVA}, {srd(SRD_WS)}, s{sT0} offen sc1")
        if part == 2:
            g.e(f"""s_not_b64 exec, {sp(sVMASK)}
            buffer_load_dwordx4 {vr(A_KVL,4)}, v{A_KVA}, {srd(SRD_WS)}, s{sAT} offen sc1
            buffer_load_dwordx4 {vr(A_KVL+4,4)}, v{A_KVA}, {srd(SRD_WS)}, s{sAT} offen offset:32 sc1""")
        g.e("s_mov_b64 exec, -1")
        g.vm_issue("kvl", len(js) + (2 if part == 2 else 0))
    for i in range(3):
        at(L, tp + 2 + i, lambda i=i: kv_loads(i), 'kv_loads')

    def ob_mfma():
        g.vm_wait("kvl")
        cvt_block(g, A_T, A_KVL, 8)
        g.e(f"""s_waitcnt lgkmcnt(0)
        v_add_f32 v{A_G}, v{A_G}, v{A_G1}
        v_mul_f32 v{A_G}, {f32(-LOG2E)}, v{A_G}
        v_mfma_f32_32x32x16_bf16 {vr(A_DN,16)}, {vr(A_T,4)}, {vr(A_PQ,4)}, 0
        v_exp_f32 v{A_G}, v{A_G}""")
        o_poll_addr(g)
        g.e(f"""v_add_f32 v{A_G}, 1.0, v{A_G}
        v_rcp_f32 v{A_G}, v{A_G}""")
    at(H, tp + 6, ob_mfma)

    def ob_fin():
        g.e(f"""v_add_f32 v{A_T}, {f32(1e-6)}, v{A_DN+8}
        v_rcp_f32 v{A_T}, v{A_T}
        v_sub_f32 v{A_G1}, 1.0, v{A_G}
        v_mul_f32 v{A_T}, v{A_G1}, v{A_T}""")
        for j in range(0, 8, 2):
            g.e(f"v_pk_mul_f32 {vr(A_DN+j,2)}, {vr(A_DN+j,2)}, {vr(A_T,2)} op_sel_hi:[1,0]")
        cvt_block(g, A_DN + 12, A_DN, 8)
    at(H, tp + 7, ob_fin)

    def ob_store():
        o_store_addr(g, WS_OB, sT2)
        g.e(f"buffer_store_dwordx4 {vr(A_DN+12,4)}, v{A_VK}, {srd(SRD_WS)}, s{sT2} offen sc1")
        g.vm_issue("obst")
    at(L, tp + 7, ob_store)

    def fob_flag():
        g.vm_wait("obst")
        o_flag_store(g, WS_FOB)
        g.vm_issue("fob")
    at(L, tp + 9, fob_flag)

    def fob_poll_issue():
        g.e(f"s_mov_b32 s{sAT}, {WS_FOB}\n{fob_poll}")
        o_frag_addr(g, WS_OB)
        g.vm_issue("fobpoll")
    at(L, tb, fob_poll_issue)

    def fob_check():
        g.vm_wait("fobpoll")
        spin_check(g, fob_poll, "fob")
    at(H, tb + 2, fob_check)

    def obf_loads(js):
        for j in js:
            o_frag_load(g, A_OBF, j)
        g.vm_issue("obf", len(js))
    for i, js in enumerate(((0, 1, 2), (3, 4, 5), (6, 7))):
        at(L, tb + 2 + i, lambda js=js: obf_loads(js), 'obf')

    def tail_addrs():
        WB, WA = A_WB, A_WB + 2
        g.e(f"""v_bfe_u32 v1, v{A_LANE}, 2, 2
        v_lshrrev_b32 v2, 5, v{A_LANE}
        v_lshl_add_u32 v1, v2, 2, v1
        v_lshlrev_b32 v{WB}, 7, v1
        v_bfe_u32 v1, v{A_LANE}, 3, 1
        s_lshr_b32 s{sT0}, s{sHD}, 1
        v_xor_b32 v1, s{sT0}, v1
        v_bfe_u32 v2, v{A_LANE}, 4, 1
        s_and_b32 s{sT1}, s{sHD}, 1
        v_xor_b32 v2, s{sT1}, v2
        v_lshl_add_u32 v1, v1, 1, v2
        v_lshlrev_b32 v1, 5, v1
        v_and_b32 v2, 3, v{A_LANE}
        v_lshl_add_u32 v1, v2, 3, v1
        v_add_u32 v{WB}, v{WB}, v1
        s_lshl_b32 s{sT0}, s{sHD}, 14
        v_add_u32 v{WB}, s{sT0}, v{WB}
        v_xor_b32 v{WB+1}, 64, v{WB}
        v_add_u32 v{WA}, {L_WOA}, v{WB}
        v_add_u32 v{WA+1}, {L_WOA}, v{WB+1}""")
    g.tail_addrs = tail_addrs

    def tail_addrs2():
        for j in range(1, 4):
            g.e(f"""s_xor_b32 s{sT0}, s{sWAVE}, {j}
            s_mul_i32 s{sT0}, s{sT0}, 6144
            s_add_u32 s{sT0}, s{sT0}, {L_RED + (j-1)*2048}
            v_add_u32 v{A_RA+j}, s{sT0}, v{A_VK}""")
        g.e(f"""s_mul_i32 s{sT0}, s{sWAVE}, 6144
        s_add_u32 s{sT0}, s{sT0}, {L_RED}
        v_add_u32 v{A_RA}, s{sT0}, v{A_VK}
        v_and_b32 v1, 31, v{A_LANE}
        v_lshlrev_b32 v1, 10, v1
        v_lshrrev_b32 v2, 5, v{A_LANE}
        v_lshl_add_u32 v1, v2, 4, v1
        s_lshl_b32 s{sT2}, s{sOT}, 15
        s_lshl_b32 s{sT0}, s{sOC}, 7
        s_add_u32 s{sT2}, s{sT2}, s{sT0}
        s_lshl_b32 s{sT0}, s{sHD}, 5
        s_add_u32 s{sT2}, s{sT2}, s{sT0}
        v_add_u32 v{A_OUTA}, s{sT2}, v1""")
    g.tail_addrs2 = tail_addrs2
    return H, L


def oa_retry_stubs(g):
    for i in range(8):
        g.e(f"""L_oa_retry{i}:
        s_sub_u32 s{sSPIN}, s{sSPIN}, 1
        s_cbranch_scc1 L_oa_go{i}
""")
        for j in range(i, (i | 3) + 1 if g.opt.get("rblk", 1) else 8):
            o_frag_load(g, A_SA, j)
        g.e(f"s_waitcnt vmcnt(0)\ns_branch L_oa_chk{i}")


def att_finish(g, buf):
    g.e(f"""s_xor_b32 s{sT0}, s{sWAVE}, 4
    s_lshl_b32 s{sT1}, s{sT0}, 11
    s_add_u32 s{sT1}, s{sT1}, {L_STASH}
    v_add_u32 v1, s{sT1}, v{A_VK}
    s_lshl_b32 s{sT1}, s{sT0}, 8
    s_add_u32 s{sT1}, s{sT1}, {L_LX}
    v_smfmac_f32_32x32x32_bf16 {vr(A_OB,16)}, {vr(A_V1+4*buf,4)}, {vr(A_SB+8,8)}, v{A_IDX}
    v_lshl_add_u32 v2, v{A_LANE}, 2, s{sT1}
    ds_write_b128 v1, {vr(A_OA,4)}
    ds_write_b128 v1, {vr(A_OA+4,4)} offset:1024
    ds_write_b32 v2, v{A_OA+8}""")


def attention(g):
    g.att = True
    g.e("L_attn:")
    if g.opt.get("idle"):
        g.e(f"""s_memrealtime s[92:93]
        s_waitcnt lgkmcnt(0)
        s_add_u32 s98, s92, {g.opt['idle']}
        L_idle:
        s_sleep 2
        s_memrealtime s[92:93]
        s_waitcnt lgkmcnt(0)
        s_sub_u32 s99, s92, s98
        s_cmp_lt_i32 s95, 0
        s_cbranch_scc1 L_idle""")
    g.e(f"""v_mov_b32 v3, {L_QC}
    ds_read_b32 v{A_T}, v3""")
    g.stamp(5)
    g.vm_reset()
    g.vm_issue(0, 2)
    g.vm_issue(1, 3)
    g.vm_issue(2, kv_group(g, 2, KD))
    g.e(f"""s_lshl_b32 s{sT0}, s{sHD}, 11
    s_lshl_b32 s{sT1}, s{sKH}, 10
    s_add_u32 s{sT2}, s{sT0}, s{sT1}
    s_add_u32 s{sT2}, s{sT2}, {L_STASH}
    s_xor_b32 s{sT3}, s{sT2}, 1024
    v_add_u32 v{A_T+2}, s{sT2}, v{A_VK}
    v_add_u32 v2, s{sT3}, v{A_VK}""")
    lds_wait(g, 3, A_T, 2, "q")
    g.e(f"""ds_read_b128 {vr(A_Q,4)}, v2
    ds_read_b128 {vr(A_Q+4,4)}, v{A_T+2}
    v_and_b32 v3, 31, v{A_LANE}
    v_lshlrev_b32 v{A_PA}, 7, v3
    v_lshlrev_b32 v3, 2, v3
    s_lshl_b32 s{sT0}, s{sKH}, 7
    s_add_u32 s{sT0}, s{sT0}, {L_GP}
    v_add_u32 v{A_T+3}, s{sT0}, v3
    s_lshl_b32 s{sT0}, s{sQUAD}, 1
    s_lshr_b32 s{sT1}, s{sHD}, 1
    s_add_u32 s{sT0}, s{sT0}, s{sT1}
    s_lshl_b32 s{sT0}, s{sT0}, 12
    s_add_u32 s{sT0}, s{sT0}, {WS_FP}
    v_add_u32 v{A_PA}, s{sT0}, v{A_PA}
    v_mov_b32 v{A_NV}, s{sNONCE}
    v_mov_b32 v{A_ZV}, 0
    s_waitcnt vmcnt(3) lgkmcnt(0)
    v_mfma_f32_32x32x16_bf16 {vr(A_SA,16)}, {vr(A_K,4)}, {vr(A_Q,4)}, 0
    v_lshrrev_b32 v1, 5, v{A_LANE}
    v_and_b32 v2, 15, v{A_LANE}
    v_lshlrev_b32 v2, 2, v2
    v_lshl_add_u32 v2, v1, 6, v2
    v_lshlrev_b32 v1, 4, v1
    v_add_u32 v1, {8*JS}, v1
    v_cndmask_b32 v{A_KVA}, v2, v1, {sp(sHMASK)}
    v_bfe_u32 v1, v{A_LANE}, 4, 1
    v_mul_u32_u24 v1, {HS}, v1
    v_add_u32 v{A_ATA+1}, v1, v2
    v_and_b32 v{A_ATA}, 0xffffffbf, v{A_ATA+1}
    v_mov_b32 v{A_T+1}, {L_PQC}
    v_mov_b64 {vr(A_DN,2)}, -1
    v_mov_b64 {vr(A_DN+2,2)}, -1""")
    g.stamp(6)
    g.cstamp(14)
    H, L = hooks(g)
    if g.opt.get("nohooks"):
        keep = g.opt.get("keep", [])
        keep = keep if isinstance(keep, list) else [keep]
        H, L = {}, {t: f for t, f in L.items() if t in keep}
    nxt = 3
    ast = g.opt.get("ast")
    for t in range(32):
        hi = (lambda t=t: [f() for f in H[t]]) if t in H else None
        if ast:
            def hi(t=t, h=hi):
                if h:
                    h()
                g.e(f"s_waitcnt lgkmcnt(0)\nv_writelane_b32 v104, s92, {t}\nv_writelane_b32 v105, s94, {t}")
            g.e("s_memtime s[92:93]\ns_memrealtime s[94:95]")
        att_step(g, t, KD, False, hi, t == 0)
        if t < 31:
            for _ in range(2):
                if nxt <= min(t + KD, 32):
                    g.vm_issue(nxt, kv_group(g, nxt, KD, v1only=(nxt == 32)))
                    nxt += 1
            for f in L.get(t, ()):
                f()
            g.vm_wait(t + 2)
    if not g.opt.get("nohooks"):
        g.vm_wait("wo", "obf")
    att_finish(g, 31 % KD)
    g.e("L_attn_done:")
    if ast:
        g.e(f"""s_memtime s[92:93]
        s_memrealtime s[94:95]
        s_waitcnt lgkmcnt(0)
        v_writelane_b32 v104, s92, 32
        v_writelane_b32 v105, s94, 32
        s_lshl_b32 s{sT0}, s2, 3
        s_add_u32 s{sT0}, s{sT0}, s{sWAVE}
        s_lshl_b32 s{sT0}, s{sT0}, 9
        s_add_u32 s{sT0}, s{sT0}, {WS_DIAG}
        v_lshlrev_b32 v1, 2, v{A_LANE}
        buffer_store_dword v104, v1, {srd(SRD_WS)}, s{sT0} offen
        buffer_store_dword v105, v1, {srd(SRD_WS)}, s{sT0} offen offset:256
        s_waitcnt vmcnt(0)""")
    g.stamp(7)
    g.cstamp(15)
    l_ok = g.label("ok")
    g.e(f"""v_xor_b32 v3, 8192, v1
    v_xor_b32 v{A_T+2}, 1024, v2
    v_mov_b32 v{A_T+3}, {L_BAD}
    s_mov_b32 s{sT2}, {f32(2.0**30)}
    s_mov_b32 s{sT3}, {f32(2.0**-30)}""")
    g.tail_addrs()
    g.e(f"""v_min_f32 v{A_T+1}, v{A_OA+8}, v{A_OB+8}
    v_add_f32 v{A_T}, v{A_OA+8}, v{A_OB+8}
    v_cmp_nle_f32 vcc, v{A_T}, s{sT2}
    v_cmp_nge_f32 {sp(sP)}, v{A_T+1}, s{sT3}
    s_or_b64 vcc, vcc, {sp(sP)}
    s_cbranch_vccz {l_ok}
    v_mov_b32 v{A_T+1}, 1
    ds_write_b32 v{A_T+3}, v{A_T+1}
    {l_ok}:
    s_waitcnt lgkmcnt(0)
    s_barrier""")
    WFB, WFA, OUTC = 176, 48, 12
    g.lgq = []

    def wread(base, areg, n):
        i, a, u = n >> 2, (n >> 1) & 1, n & 1
        g.lds((base, i), f"ds_read_b64_tr_b16 {vr(base+8*i+4*a+2*u,2)}, v{areg+a} offset:{i*2048+u*1024}")
    g.lds("bad", f"ds_read_b32 v{A_T+3}, v{A_T+3}")
    g.lds("l", f"ds_read_b32 v{A_T}, v{A_T+2}")
    g.lds("o", f"ds_read_b128 {vr(A_SA,4)}, v3")
    g.lds("o", f"ds_read_b128 {vr(A_SA+4,4)}, v3 offset:1024")
    nb = 0
    for _ in range(8):
        wread(WFB, A_WB, nb)
        nb += 1
    o_store_addr(g, WS_OA, sT2)
    g.lds_wait_tag("l")
    g.e(f"""v_readfirstlane_b32 s{sT3}, v{A_T+3}
    v_add_f32 v{A_T}, v{A_T}, v{A_OB+8}
    v_rcp_f32 v{A_T}, v{A_T}
    s_cmp_gt_u32 s{sT3}, s{sRETRY}
    s_cbranch_scc1 L_fallback
    v_mul_f32 v{A_T}, v{A_G}, v{A_T}""")
    g.lds_wait_tag("o")
    fin = [f"v_pk_add_f32 {vr(A_SA+j,2)}, {vr(A_SA+j,2)}, {vr(A_OB+j,2)}" for j in range(0, 8, 2)]
    fin += [f"v_pk_mul_f32 {vr(A_SA+j,2)}, {vr(A_SA+j,2)}, {vr(A_T,2)} op_sel_hi:[1,0]" for j in range(0, 8, 2)]
    fin += cvt_list(OUTC, A_SA, 8) + [f"v_min_u32 v{OUTC}, -2, v{OUTC}"]
    g.e("\n".join(fin))
    g.e(f"buffer_store_dwordx4 {vr(OUTC,4)}, v{A_VK}, {srd(SRD_WS)}, s{sT2} offen sc1")
    g.stamp(8)
    assert L_WOB == 0
    sched = g.opt.get("oas", [8] * 8)
    o_frag_addr(g, WS_OA)
    na = 0
    for i in range(9):
        for j in range(8):
            if sched[j] == i:
                o_frag_load(g, A_SA, j)
        if i == 8:
            break
        for a in range(2):
            for _ in range(4):
                if nb < 32:
                    wread(WFB, A_WB, nb)
                    nb += 1
                elif na < 32 and _ < 3:
                    wread(WFA, A_WB + 2, na)
                    na += 1
            if a == 0:
                g.lds_wait_tag((WFB, i))
                if i == 7:
                    g.e(f"v_mov_b32 v1, {L_WBC}\nv_mov_b32 v2, 1\ns_mov_b64 exec, 1")
                    g.lds("cnt", "ds_add_u32 v1, v2")
                    g.e("s_mov_b64 exec, -1")
            acc = vr(A_ACC + 16 * a, 16)
            g.e(f"v_mfma_f32_32x32x16_bf16 {acc}, {vr(WFB+8*i+4*a,4)}, {vr(A_OBF+4*i,4)}, {'0' if i == 0 else acc}")
    while na < 32:
        wread(WFA, A_WB + 2, na)
        na += 1
    if not g.opt.get("atlat"):
        g.stamp(9)
    g.tail_addrs2()
    g.e(f"s_mov_b32 s{sSPIN}, {SPIN_MAX}\nv_mov_b32 v1, {L_WBC}")

    def amf(i, a):
        acc = vr(A_ACC + 16 * a, 16)
        g.e(f"v_mfma_f32_32x32x16_bf16 {acc}, {vr(WFA+8*i+4*a,4)}, {vr(A_SA+4*i,4)}, {acc}")

    def chk(i):
        g.e(f"""s_waitcnt vmcnt({7-i})
        L_oa_chk{i}:
        v_cmp_eq_u32 vcc, -1, v{A_SA+4*i}
        s_cbranch_vccnz L_oa_retry{i}
        L_oa_go{i}:""")
        g.lds_wait_tag((WFA, i))

    def rw(j, h):
        g.e(f"ds_write_b128 v{A_RA+j}, {vr(A_ACC+8*j+4*h,4)} offset:{1024*h}")
    for i in range(5):
        chk(i)
        amf(i, 1)
        if i == 4:
            g.e("ds_read_b32 v2, v1")
        amf(i, 0)
    for i in range(5, 8):
        chk(i)
        amf(i, 1)
    amf(5, 0)
    lds_wait(g, 1, 2, 8, "wb")
    g.e("s_nop 3")
    rw(2, 0), rw(2, 1), amf(6, 0), rw(3, 0), rw(3, 1), amf(7, 0)
    g.stamp(11)
    g.e("s_nop 11")
    rw(1, 0), rw(1, 1)
    g.e("s_waitcnt lgkmcnt(0)\ns_barrier")
    for j in range(3):
        g.e(f"ds_read_b128 {vr(A_SA+8*j,4)}, v{A_RA} offset:{j*2048}")
        g.e(f"ds_read_b128 {vr(A_SA+8*j+4,4)}, v{A_RA} offset:{j*2048+1024}")
    for j in range(3):
        g.e(f"s_waitcnt lgkmcnt({4-2*j})")
        for i in range(0, 8, 2):
            g.e(f"v_pk_add_f32 {vr(A_ACC+i,2)}, {vr(A_ACC+i,2)}, {vr(A_SA+8*j+i,2)}")
    cvt_block(g, A_OA, A_ACC, 8)
    g.e(f"""s_nop 1
    v_permlane32_swap_b32 v{A_OA}, v{A_OA+2}
    v_permlane32_swap_b32 v{A_OA+1}, v{A_OA+3}
    buffer_store_dwordx4 {vr(A_OA,4)}, v{A_OUTX}, {srd(SRD_OUT)}, 0 offen {g.opt.get('outmod','')}""")
    if g.opt.get("diag"):
        g.e("s_waitcnt vmcnt(0)")
        g.stamp(12)
        g.e(f"""s_lshl_b32 s{sT0}, s2, 3
        s_add_u32 s{sT0}, s{sT0}, s{sWAVE}
        s_lshl_b32 s{sT0}, s{sT0}, 6
        s_add_u32 s{sT0}, s{sT0}, {WS_DIAG}
        v_mov_b32 v1, 0""")
        for i in range(16):
            g.e(f"v_mov_b32 v{16+i}, s{sST0+i}")
        g.e("s_mov_b64 exec, 1")
        for i in range(4):
            g.e(f"buffer_store_dwordx4 {vr(16+4*i,4)}, v1, {srd(SRD_WS)}, s{sT0} offen offset:{16*i}")
        if g.opt.get("dbgst") == 2:
            l = g.label("dbg")
            g.e(f"""s_cmp_eq_u32 s{sWAVE}, 0
            s_cbranch_scc0 {l}
            v_not_b32 v32, v16
            s_lshl_b32 s{sT1}, s{sQUAD}, 2
            buffer_atomic_umax v32, v1, {srd(SRD_DBG)}, 0 offen offset:4
            buffer_atomic_umax v{16+g.opt['dbgi']}, v1, {srd(SRD_DBG)}, s{sT1} offen offset:8
            buffer_atomic_umax v28, v1, {srd(SRD_DBG)}, 0 offen offset:40
            buffer_atomic_umax v18, v1, {srd(SRD_DBG)}, 0 offen offset:44
            buffer_atomic_umax v20, v1, {srd(SRD_DBG)}, 0 offen offset:48
            buffer_atomic_umax v23, v1, {srd(SRD_DBG)}, 0 offen offset:52
            {l}:""")
        if g.opt.get("dbgst") == 1:
            g.e("v_not_b32 v32, v16")
            g.e(f"buffer_atomic_umax v32, v1, {srd(SRD_DBG)}, 0 offen offset:4")
            for i in range(13):
                g.e(f"buffer_atomic_umax v{16+i}, v1, {srd(SRD_DBG)}, 0 offen offset:{8+4*i}")
    g.e("L_end:\ns_endpgm")


def fallback(g):
    M = A_T
    g.e(f"""L_fallback:
    s_mov_b32 s{sRETRY}, 1
    s_waitcnt vmcnt(0) lgkmcnt(0)
    v_mov_b32 v{M}, 0xff800000
    v_mov_b32 v{M+1}, 0xff800000
    s_mov_b32 s{sT4}, 0
    L_fb_loop:
    s_add_u32 s{sT0}, s{sT4}, s{sKVB}
    buffer_load_dwordx4 {vr(A_K,4)}, v{A_VK}, {srd(SRD_WS)}, s{sT0} offen sc1
    s_waitcnt vmcnt(0)
    v_mfma_f32_32x32x16_bf16 {vr(A_SA,16)}, {vr(A_K,4)}, {vr(A_Q,4)}, 0
    v_mfma_f32_32x32x16_bf16 {vr(A_SB,16)}, {vr(A_K,4)}, {vr(A_Q+4,4)}, 0
    s_nop 11""")
    for i in range(0, 16, 2):
        g.e(f"v_max3_f32 v{M}, v{A_SA+i}, v{A_SA+i+1}, v{M}")
    for i in range(0, 16, 2):
        g.e(f"v_max3_f32 v{M+1}, v{A_SB+i}, v{A_SB+i+1}, v{M+1}")
    g.e(f"""s_add_u32 s{sT4}, s{sT4}, 2048
    s_cmp_lt_u32 s{sT4}, 65536
    s_cbranch_scc1 L_fb_loop
    v_mov_b32 v{M+2}, v{M}
    v_mov_b32 v{M+3}, v{M+1}
    s_nop 1
    v_permlane32_swap_b32 v{M}, v{M+2}
    v_permlane32_swap_b32 v{M+1}, v{M+3}
    v_max_f32 v{M}, v{M}, v{M+2}
    v_max_f32 v{M+1}, v{M+1}, v{M+3}
    s_lshl_b32 s{sT0}, s{sWAVE}, 9
    s_add_u32 s{sT0}, s{sT0}, {L_MX}
    v_lshl_add_u32 v1, v{A_LANE}, 2, s{sT0}
    v_xor_b32 v2, 2048, v1
    ds_write_b32 v1, v{M}
    ds_write_b32 v1, v{M+1} offset:256
    s_waitcnt lgkmcnt(0)
    s_barrier
    ds_read_b32 v{M+2}, v2 offset:256
    ds_read_b32 v{M+3}, v2
    s_waitcnt lgkmcnt(0)
    v_max_f32 v{M}, v{M}, v{M+2}
    v_max_f32 v{M+1}, v{M+1}, v{M+3}""")
    for i in range(16):
        g.e(f"v_sub_f32 v{A_CA+i}, 0, v{M}\nv_sub_f32 v{A_CB+i}, 0, v{M+1}")
    g.e(f"""v_and_b32 v1, 27, v{A_LANE}
    v_cmp_eq_u32 vcc, 16, v1
    v_mov_b32 v2, 0
    v_mov_b32 v3, 0x3f803f80
    v_cndmask_b32 v1, v2, v3, vcc""")
    for i in range(16):
        g.e(f"v_mov_b32 v{A_V0+i}, v1\nv_mov_b32 v{A_V1+i}, v1")
    att_prefetch(g, 4, 4)
    zero_o(g)
    for i in range(0, 8, 2):
        g.e(f"v_mov_b64 {vr(A_SB+8+i,2)}, 0")
    g.e(f"""s_waitcnt vmcnt(6)
    v_mfma_f32_32x32x16_bf16 {vr(A_SA,16)}, {vr(A_K,4)}, {vr(A_Q,4)}, {vr(A_CA,16)}""")
    g.e(f"s_nop 11\ns_mov_b32 s{sT4}, 8\nL_fb_run:")
    for t in range(4):
        att_step(g, t, 4, True)
        kv_group(g, t + 4, 4)
        g.e("s_waitcnt vmcnt(6)")
    g.e(f"""s_sub_u32 s{sT4}, s{sT4}, 1
    s_cmp_lg_u32 s{sT4}, 0
    s_cbranch_scc1 L_fb_run
""")
    att_finish(g, 3)
    g.e("s_waitcnt vmcnt(0)\ns_branch L_attn_done")


HEADER = """; Fused kernel: QKV projections (both branches) -> softmax attention + linear attention -> gated
; output projection.  One workgroup per CU: (row block of 64 tokens) x (4 heads).
; @launch grid=(256,1,1) block=(512,1,1) lds=%d
.amdgcn_target "amdgcn-amd-amdhsa--gfx950"
.text
.globl %s
.p2align 8
.type %s,@function
%s:
"""

FOOTER = """L_codeend:
.section .rodata,"a"
.p2align 6
.amdhsa_kernel %s
  .amdhsa_next_free_vgpr 256
  .amdhsa_next_free_sgpr 102
  .amdhsa_accum_offset 256
  .amdhsa_group_segment_fixed_size 0
  .amdhsa_kernarg_size 80
  .amdhsa_user_sgpr_count 2
  .amdhsa_user_sgpr_kernarg_segment_ptr 1
  .amdhsa_system_sgpr_workgroup_id_x 1
.end_amdhsa_kernel
"""


def generate(opt):
    g = G(opt)
    prologue(g)
    loader(g)
    g.e(f"L_compute:\ns_cmp_ge_u32 s{sWAVE}, 2\ns_cbranch_scc1 L_compute1")
    compute(g, 0)
    g.e("L_compute1:")
    compute(g, 1)
    attention(g)
    oa_retry_stubs(g)
    fallback(g)
    body = "\n".join(g.o) + "\n"
    errs = [] if opt.get("fake16") else hazard.check(body, "gen")
    if errs:
        print("\n".join(errs), file=sys.stderr)
        raise SystemExit("hazards found")
    return HEADER % (LDS_BYTES, KNAME, KNAME, KNAME) + body + FOOTER % KNAME


if __name__ == "__main__":
    opt = {}
    out = "gated_mix__softmax_full_mha__linear_attn_block__prompt.s"
    for a in sys.argv[1:]:
        if "=" in a:
            k, v = a.split("=", 1)
            if k == "out":
                out = v
            else:
                try:
                    opt[k] = [int(x) for x in v.split(",")] if "," in v else int(v, 0)
                except ValueError:
                    opt[k] = v
    open(out, "w").write(generate(opt))
    print("wrote", out)
```

```python
import struct
import sys

sys.path.insert(0, "gen")
import hazard

KNAME = "gated_mix__softmax_full_mha__linear_attn_block__prompt_kernel"


def f32(x):
    return "0x%08x" % struct.unpack("<I", struct.pack("<f", x))[0]


LOG2E = 1.4426950408889634

WS_KV = 0x000000
HEAD_STRIDE = 0x20000
WS_P = 0x400000
WS_OB = 0x500000
WS_OA = 0x700000
WS_FKV = 0x900000
WS_FP = 0x908000
WS_FOB = 0x920000
WS_FOA = 0x930000
WS_DIAG = 0xA00000
WS_SIZE = 0xB00000

L_X = 0
L_RING = 65536
L_STASH = 65536
L_WOB = 0
L_WOA = 81920
L_RED = 0
L_MISC = 147456
L_GATE = L_MISC
L_GP = L_MISC + 1024
L_NONCE = L_MISC + 1536
L_BAD = L_MISC + 1540
L_PQC = L_MISC + 1544
L_QC = L_MISC + 1548
L_LX = L_MISC + 2048
L_MX = L_MISC + 4096
LDS_BYTES = 163840

SRD_X, SRD_WA, SRD_WB, SRD_WS, SRD_W2 = 4, 8, 12, 16, 20
SRD_OA, SRD_OB, SRD_OUT, SRD_DBG, SRD_G = 24, 28, 32, 36, 40
sQUAD, sRB, sROT, sWAVE, sNONCE = 44, 45, 46, 47, 48
sT0, sT1, sT2, sT3, sT4, sT5 = 49, 50, 51, 52, 53, 54
sXB, sWB1, sWB2 = 55, 56, 57
sWOM, sWOS, sAT = 55, 56, 57
sKVB, sKVO, sKVS = 58, 59, 60
sKROT = 61
sVMASK = 62
sRETRY, sSPIN = 64, 65
sHD, sKH, sTILE = 66, 67, 68
sC3 = 69
sC1 = 70
sHMASK = 72
sC2 = 74
sSTAMP = 76
sP = 78
sGM = 100
sST0 = 80

SPIN_MAX = 100000

KD = 6
A_Q = 4
A_PQ = 12
A_SA, A_SB = 16, 32
A_OA, A_OB = 48, 64
A_CA, A_CB = 80, 96
A_KVL = 80
A_K = 112
A_ACC = 112
A_NV, A_ZV, A_KVA = 136, 137, 138
A_OBF = 144
A_ATD, A_ATA = 144, 153
A_DN = 176
A_WB, A_RA, A_OUTA, A_OUTX = 240, 12, 253, 253
A_V0 = 192
A_V1 = 216
A_WF = 192
A_VO = 240
A_T = 244
A_VK, A_VV, A_IDX, A_G, A_G1, A_POLL, A_PA, A_LANE = 248, 249, 250, 251, 252, 253, 254, 255


class G:
    def __init__(self, opt):
        self.o = []
        self.opt = opt
        self.nlabel = 0

    def e(self, s):
        for line in s.split("\n"):
            line = line.strip()
            if line:
                self.o.append(line if line.endswith(":") else "    " + line)

    def label(self, p):
        self.nlabel += 1
        return f"L_{p}_{self.nlabel}"

    def vm_reset(self):
        self.vm = []

    def vm_issue(self, tag, n=1, optional=False):
        self.vm += [(tag, optional)] * n

    def vm_wait(self, *tags):
        idx = [i for i, (t, _) in enumerate(self.vm) if t in tags]
        if not idx:
            return
        last = max(idx)
        k = sum(1 for t, o in self.vm[last + 1:] if not o)
        assert k <= 63
        self.e(f"s_waitcnt vmcnt({k})")

    def cstamp(self, idx):
        if self.opt.get("diag"):
            self.e(f"s_memtime s[{sSTAMP}:{sSTAMP+1}]\ns_waitcnt lgkmcnt(0)\ns_mov_b32 s{sST0+idx}, s{sSTAMP}")

    def stamp(self, idx):
        if self.opt.get("kst") and 8 <= idx <= 13 and getattr(self, "att", False):
            return
        if self.opt.get("diag"):
            self.e(f"s_memrealtime s[{sSTAMP}:{sSTAMP+1}]\ns_waitcnt lgkmcnt(0)\ns_mov_b32 s{sST0+idx}, s{sSTAMP}")


def vr(b, n):
    return f"v[{b}:{b+n-1}]"


def srd(b):
    return f"s[{b}:{b+3}]"


def sp(b):
    return f"s[{b}:{b+1}]"


def spin_check(g, reload, tag):
    l0, l1 = g.label(tag), g.label(tag + "ok")
    g.e(f"""s_mov_b32 s{sSPIN}, {SPIN_MAX}
    {l0}:
    v_cmp_ne_u32 vcc, s{sNONCE}, v{A_POLL}
    s_sub_u32 s{sSPIN}, s{sSPIN}, 1
    s_cbranch_vccz {l1}
    s_cbranch_scc1 {l1}
    {reload}
    s_waitcnt vmcnt(0)
    s_branch {l0}
    {l1}:""")


SRD_SIZES = {SRD_X: 0x200000, SRD_WA: 0x180000, SRD_G: 1024, SRD_WB: 0x180000, SRD_W2: 0x180000,
             SRD_OA: 0x80000, SRD_OB: 0x80000, SRD_OUT: 0x200000, SRD_DBG: 256, SRD_WS: WS_SIZE}


def srd_words(g, which):
    for b in which:
        g.e(f"s_mov_b32 s{b+2}, {SRD_SIZES[b]:#x}\ns_mov_b32 s{b+3}, 0x00020000")


def prologue(g):
    g.e(f"""s_load_dwordx2 {sp(SRD_X)}, s[0:1], 0
    s_load_dwordx2 {sp(SRD_WA)}, s[0:1], 8
    s_load_dwordx2 {sp(SRD_G)}, s[0:1], 48
    s_load_dwordx2 {sp(SRD_WB)}, s[0:1], 32
    s_load_dwordx2 {sp(SRD_OA)}, s[0:1], 16
    s_load_dwordx2 {sp(SRD_OB)}, s[0:1], 40
    s_load_dwordx2 {sp(SRD_OUT)}, s[0:1], 56
    s_load_dwordx2 {sp(SRD_DBG)}, s[0:1], 64
    s_load_dwordx2 {sp(SRD_WS)}, s[0:1], 72""")
    if g.opt.get("diag"):
        g.e(f"s_memrealtime {sp(sSTAMP)}")
    g.e(f"""s_cmp_ge_u32 s2, 256
    s_cbranch_scc1 L_end
    v_lshrrev_b32 v1, 6, v0
    v_and_b32 v{A_LANE}, 63, v0
    v_readfirstlane_b32 s{sWAVE}, v1""")
    g.e(f"""s_lshr_b32 s{sT1}, s2, 3
    s_and_b32 s{sQUAD}, s2, 3
    s_lshl_b32 s{sQUAD}, s{sQUAD}, 1
    s_and_b32 s{sT2}, s{sT1}, 1
    s_add_u32 s{sQUAD}, s{sQUAD}, s{sT2}
    s_and_b32 s{sRB}, s2, 4
    s_lshl_b32 s{sRB}, s{sRB}, 2
    s_lshr_b32 s{sT3}, s2, 4
    s_add_u32 s{sRB}, s{sRB}, s{sT3}
    s_lshl_b32 s{sROT}, s{sT2}, 2
    s_add_u32 s{sROT}, s{sROT}, s{sT3}
    s_and_b32 s{sROT}, s{sROT}, 7
    s_and_b32 s{sHD}, s{sWAVE}, 3
    s_lshr_b32 s{sKH}, s{sWAVE}, 2
    s_cmp_ge_u32 s{sWAVE}, 4
    s_cbranch_scc0 L_compute""")


def nonce_check(g, vdat, vzero):
    l, lp = g.label("nn"), g.label("np")
    g.e(f"""s_mov_b32 s{sSPIN}, {SPIN_MAX}
    {lp}:
    v_readfirstlane_b32 s{sNONCE}, v{vdat}
    s_sub_u32 s{sSPIN}, s{sSPIN}, 1
    s_cbranch_scc1 {l}
    s_cmp_lg_u32 s{sNONCE}, 0
    s_cbranch_scc1 {l}
    buffer_load_dword v{vdat}, v{vzero}, {srd(SRD_DBG)}, 0 offen sc1
    s_waitcnt vmcnt(0)
    s_branch {lp}
    {l}:""")


def lds_count(g, addr):
    g.e(f"""v_mov_b32 v1, {addr}
    v_mov_b32 v2, 1
    s_waitcnt lgkmcnt(0)
    s_mov_b64 exec, 1
    ds_add_u32 v1, v2
    s_mov_b64 exec, -1""")


def lds_wait(g, vaddr, vdat, n, tag):
    l0, l1 = g.label(tag), g.label(tag + "ok")
    g.e(f"""s_mov_b32 s{sSPIN}, {SPIN_MAX}
    {l0}:
    s_waitcnt lgkmcnt(0)
    v_readfirstlane_b32 s{sT0}, v{vdat}
    s_sub_u32 s{sSPIN}, s{sSPIN}, 1
    s_cbranch_scc1 {l1}
    s_cmp_eq_u32 s{sT0}, {n}
    s_cbranch_scc1 {l1}
    ds_read_b32 v{vdat}, v{vaddr}
    s_branch {l0}
    {l1}:""")


def zero_o(g):
    for b in (A_OA, A_OB):
        for i in range(0, 10, 2):
            g.e(f"v_mov_b64 {vr(b+i,2)}, 0")


def x_read_addrs(g, base):
    g.e(f"""v_and_b32 v1, 31, v{A_LANE}
    v_lshrrev_b32 v2, 5, v{A_LANE}
    v_bfe_u32 v3, v{A_LANE}, 1, 3
    v_xor_b32 v2, v2, v3
    v_lshlrev_b32 v1, 7, v1""")
    for s in range(4):
        g.e(f"v_xor_b32 v3, {2*s}, v2\nv_lshl_add_u32 v{base+s}, v3, 4, v1")


def loader(g):
    D = g.opt.get("D", 3)
    vW, vX, aXg, vG, vGh, acc = 4, 8, 10, 14, 15, 16
    fX, fG = 80, 144
    srd_words(g, (SRD_X, SRD_WA))
    g.e(f"""v_lshrrev_b32 v1, 3, v{A_LANE}
    v_and_b32 v2, 7, v{A_LANE}
    v_lshrrev_b32 v3, 4, v{A_LANE}
    v_xor_b32 v3, v3, v2
    v_lshlrev_b32 v{vX}, 10, v1
    v_lshl_add_u32 v{vX}, v3, 4, v{vX}
    v_xor_b32 v{vX+1}, 64, v{vX}
    v_add_u32 v{vX+1}, 7168, v{vX+1}
    v_bfe_u32 v3, v{A_LANE}, 4, 1
    v_lshlrev_b32 v3, 2, v3
    v_xor_b32 v3, v3, v2
    v_lshlrev_b32 v3, 4, v3
    v_mul_u32_u24 v{vW}, 3072, v1
    v_add_u32 v{vW}, v{vW}, v3
    v_add_u32 v{vW+1}, {1*23552}, v{vW}
    v_add_u32 v{vW+2}, {2*23552}, v{vW}
    v_add_u32 v{vW+3}, {3*23552}, v{vW}
    s_lshl_b32 s{sXB}, s{sRB}, 16
    s_lshl_b32 s{sT0}, s{sHD}, 14
    s_add_u32 s{sXB}, s{sXB}, s{sT0}
    s_lshl_b32 s{sT3}, s{sQUAD}, 7
    s_lshr_b32 s{sT0}, s{sHD}, 1
    s_lshl_b32 s{sT0}, s{sT0}, 10
    s_add_u32 s{sWB1}, s{sT3}, s{sT0}
    s_add_u32 s{sWB1}, s{sWB1}, 1024
    s_and_b32 s{sT0}, s{sHD}, 1
    s_mul_i32 s{sT0}, s{sT0}, {32*3072}
    s_add_u32 s{sWB1}, s{sWB1}, s{sT0}
    s_lshl_b32 s{sT4}, s{sHD}, 11
    s_lshl_b32 s{sT5}, s{sHD}, 12
    s_waitcnt lgkmcnt(0)""")
    if g.opt.get("diag"):
        g.e(f"s_mov_b32 s{sST0}, s{sSTAMP}")

    def issue(c):
        slot = c % 5
        if c < 8:
            p = c
            g.e(f"""s_add_u32 s{sT0}, s{sROT}, {p}
            s_and_b32 s{sT0}, s{sT0}, 7
            s_lshl_b32 s{sT1}, s{sT0}, 7
            s_add_u32 s{sT1}, s{sT1}, s{sXB}
            s_add_u32 m0, s{sT4}, {L_X + p*8192}
            s_mul_i32 s{sT2}, s{sT0}, {64*3072}
            buffer_load_dwordx4 v{vX}, {srd(SRD_X)}, s{sT1} offen lds
            buffer_load_dwordx4 v{vX+1}, {srd(SRD_X)}, s{sT1} offen offset:1024 lds
            s_add_u32 m0, s{sT5}, {L_RING + slot*16384}
            s_add_u32 s{sT2}, s{sT2}, s{sWB1}""")
            for k in range(4):
                g.e(f"buffer_load_dwordx4 v{vW+k}, {srd(SRD_WA)}, s{sT2} offen offset:{k*1024} lds")
            if c == 0:
                srd_words(g, (SRD_G,))
                g.e(f"""s_mov_b32 m0, {L_GATE}
                v_lshlrev_b32 v{vG}, 4, v{A_LANE}
                buffer_load_dwordx4 v{vG}, {srd(SRD_G)}, 0 offen lds""")
                return 7
            return 6
        p, sub = (c - 8) >> 1, (c - 8) & 1
        g.e(f"""s_add_u32 s{sT0}, s{sROT}, {p}
        s_and_b32 s{sT0}, s{sT0}, 7
        s_mul_i32 s{sT2}, s{sT0}, {64*3072}
        s_add_u32 m0, s{sT5}, {L_RING + slot*16384}
        s_add_u32 s{sT2}, s{sT2}, s{sWB2}""")
        if sub:
            g.e(f"s_add_u32 s{sT2}, s{sT2}, {32*3072}")
        n = 4
        for k in range(4):
            g.e(f"buffer_load_dwordx4 v{vW+k}, {srd(SRD_W2)}, s{sT2} offen offset:{k*1024} lds")
        return n

    D0 = g.opt.get("D0", 2)
    n = [issue(c) for c in range(D0)]
    g.stamp(1)
    srd_words(g, (SRD_WB, SRD_W2, SRD_OA, SRD_OB, SRD_OUT, SRD_DBG, SRD_WS))
    g.e(f"""s_cmp_eq_u32 s{sHD}, 2
    s_cselect_b32 s{SRD_W2}, s{SRD_WA}, s{SRD_WB}
    s_cselect_b32 s{SRD_W2+1}, s{SRD_WA+1}, s{SRD_WB+1}
    s_add_u32 s{sT0}, s{sHD}, 1
    s_lshl_b32 s{sT0}, s{sT0}, 10
    s_cmp_ge_u32 s{sHD}, 2
    s_cselect_b32 s{sT0}, 0, s{sT0}
    s_add_u32 s{sWB2}, s{sT3}, s{sT0}""")
    g.e(f"""v_and_b32 v1, 31, v{A_LANE}
    v_lshlrev_b32 v{A_PA}, 7, v1
    s_lshl_b32 s{sT3}, s{sQUAD}, 12
    s_add_u32 s{sT3}, s{sT3}, {WS_FKV}
    v_add_u32 v{A_PA}, s{sT3}, v{A_PA}""")
    att_const_setup(g)
    g.e("v_mov_b32 v13, 0")
    pollc = g.opt.get("pollc", 22)
    flagc = g.opt.get("flagc", 16)
    poll = f"buffer_load_dword v{A_POLL}, v{A_PA}, {srd(SRD_WS)}, 0 offen sc1"
    for c in range(24):
        out = sum(n[c + 1:])
        if c > pollc:
            out += 2
        if g.opt.get("bst") and c:
            g.e(f"s_waitcnt lgkmcnt(0)\nv_writelane_b32 v40, s96, {c-1}\nv_writelane_b32 v41, s98, {c-1}")
        g.e(f"s_waitcnt vmcnt({out})\ns_barrier")
        if g.opt.get("bst"):
            g.e("s_memtime s[96:97]\ns_memrealtime s[98:99]")
        if c == 0:
            g.stamp(2)
        if c == 8:
            g.stamp(3)
        look = g.opt.get("look")
        d = look[c] if look else D
        assert d <= 4
        while len(n) < min(24, c + 1 + d):
            n.append(issue(len(n)))
        if c == pollc:
            g.e(f"buffer_load_dword v12, v13, {srd(SRD_DBG)}, 0 offen sc1\n{poll}")
    if g.opt.get("bst"):
        g.e(f"s_waitcnt lgkmcnt(0)\nv_writelane_b32 v40, s96, 23\nv_writelane_b32 v41, s98, 23")
    g.e("s_waitcnt vmcnt(0)")
    nonce_check(g, 12, 13)
    g.e("s_nop 0")
    spin_check(g, poll, "fkv")
    if g.opt.get("bst"):
        g.e(f"""s_memtime s[96:97]
        s_memrealtime s[98:99]
        s_waitcnt lgkmcnt(0)
        v_writelane_b32 v40, s96, 24
        v_writelane_b32 v41, s98, 24
        s_lshl_b32 s{sT0}, s2, 2
        s_add_u32 s{sT0}, s{sT0}, s{sHD}
        s_lshl_b32 s{sT0}, s{sT0}, 9
        s_add_u32 s{sT0}, s{sT0}, {WS_DIAG + 0x40000}
        v_lshlrev_b32 v1, 2, v{A_LANE}
        buffer_store_dword v40, v1, {srd(SRD_WS)}, s{sT0} offen
        buffer_store_dword v41, v1, {srd(SRD_WS)}, s{sT0} offen offset:256
        s_waitcnt vmcnt(0)""")
    g.stamp(4)
    g.e("s_barrier")
    att_prefetch(g, KD, 2)
    zero_o(g)
    g.e("s_branch L_attn")


def att_const_setup(g):
    g.e(f"""v_lshlrev_b32 v{A_VK}, 4, v{A_LANE}
    v_lshrrev_b32 v1, 5, v{A_LANE}
    v_and_b32 v2, 15, v{A_LANE}
    v_lshlrev_b32 v1, 8, v1
    v_lshl_add_u32 v1, v2, 4, v1
    v_add_u32 v{A_VV}, 1024, v1
    v_mov_b32 v{A_IDX}, 0xdddd
    s_mov_b32 s{sVMASK}, 0xffff
    s_mov_b32 s{sVMASK+1}, 0xffff
    s_mov_b32 s{sHMASK}, 0xffff0000
    s_mov_b32 s{sHMASK+1}, 0xffff0000
    s_mov_b32 s{sRETRY}, 0
    s_lshl_b32 s{sT0}, s{sQUAD}, 2
    s_add_u32 s{sT0}, s{sT0}, s{sHD}
    s_mul_i32 s{sKVB}, s{sT0}, {HEAD_STRIDE}
    s_lshl_b32 s{sT1}, s{sKH}, 16
    s_add_u32 s{sKVB}, s{sKVB}, s{sT1}
    s_lshl_b32 s{sTILE}, s{sRB}, 1
    s_add_u32 s{sTILE}, s{sTILE}, s{sKH}""")
    if WS_KV:
        g.e(f"s_add_u32 s{sKVB}, s{sKVB}, {WS_KV}")
    if g.opt.get("krot", 1):
        g.e(f"s_lshl_b32 s{sKROT}, s{sRB}, 12\ns_and_b32 s{sKROT}, s{sKROT}, 0xffff")
    else:
        g.e(f"s_mov_b32 s{sKROT}, 0")
    g.e(f"""v_and_b32 v1, 27, v{A_LANE}
    v_cmp_eq_u32 vcc, 16, v1
    v_mov_b32 v2, 0
    v_mov_b32 v3, 0x3f803f80
    v_cndmask_b32 v1, v2, v3, vcc""")
    for i in range(8 * KD):
        g.e(f"v_mov_b32 v{A_V0+i}, v1")
    g.e(f"""v_lshrrev_b32 v1, 3, v{A_LANE}
    v_and_b32 v2, 7, v{A_LANE}
    v_bfe_u32 v3, v{A_LANE}, 4, 1
    v_lshlrev_b32 v3, 2, v3
    v_xor_b32 v3, v3, v2
    v_lshlrev_b32 v3, 4, v3
    v_lshl_add_u32 v{A_VO}, v1, 10, v3""")


def kv_group(g, kt, kd, first=False, v1only=False):
    g.e(f"s_mov_b64 exec, {sp(sVMASK)}")
    if not first:
        g.e(f"buffer_load_dwordx4 {vr(A_V1+4*((kt-1)%kd),4)}, v{A_VV}, {srd(SRD_WS)}, s{sKVS} offen offset:512 sc1")
        if v1only:
            g.e("s_mov_b64 exec, -1")
            return 1
        g.e(f"""s_add_u32 s{sKVO}, s{sKVO}, 2048
        s_and_b32 s{sKVO}, s{sKVO}, 0xffff
        s_add_u32 s{sKVS}, s{sKVO}, s{sKVB}""")
    g.e(f"""buffer_load_dwordx4 {vr(A_V0+4*(kt%kd),4)}, v{A_VV}, {srd(SRD_WS)}, s{sKVS} offen sc1
    s_mov_b64 exec, -1
    buffer_load_dwordx4 {vr(A_K+4*(kt%kd),4)}, v{A_VK}, {srd(SRD_WS)}, s{sKVS} offen sc1""")
    return 2 if first else 3


def att_prefetch(g, kd, n):
    g.e(f"s_mov_b32 s{sKVO}, s{sKROT}\ns_add_u32 s{sKVS}, s{sKVO}, s{sKVB}")
    for t in range(n):
        kv_group(g, t, kd, first=(t == 0))


PHI_T, PHI_C = 176, 14


def phi_block(g, src, n):
    T = PHI_T
    for b in range(0, n, 8):
        for j in range(0, 8, 2):
            g.e(f"v_pk_fma_f32 {vr(T+j,2)}, {vr(src+b+j,2)}, {sp(sC1)}, {vr(PHI_C,2)}")
        for j in range(8):
            g.e(f"v_exp_f32_e64 v{T+j}, v{T+j} clamp")
        for j in range(8):
            g.e(f"v_max_f32 v{src+b+j}, s{sC3}, v{src+b+j}")
        for j in range(0, 8, 2):
            g.e(f"v_pk_add_f32 {vr(src+b+j,2)}, {vr(T+j,2)}, {vr(src+b+j,2)}")


def cvt_list(dst, src, n):
    return [f"v_cvt_pk_bf16_f32 v{dst+j}, v{src+2*j}, v{src+2*j+1}" for j in range(n // 2)]


def cvt_block(g, dst, src, n):
    g.e("\n".join(cvt_list(dst, src, n)))


def compute(g, var):
    aX, aW0, aW1, vST = 4, 8, 9, 10
    SET = (16, 64)
    ACC1 = 112
    phi_ty = 0 if var == 0 else 1
    ACC2 = {(phi_ty, 0): 144, (phi_ty, 1): 160, (1 - phi_ty, 0): 48, (1 - phi_ty, 1): 96}

    def wa(slot):
        return (aW1, 0) if slot == 4 else (aW0, slot * 16384)

    def reads(c):
        reg, off = wa(c % 5)
        o = []
        if c < 8:
            for s in range(4):
                b = SET[c & 1] + 12 * s
                wo = off + var * 8192 + s * 2048
                o += [f"ds_read_b128 {vr(b,4)}, v{aX+s} offset:{L_X + c*8192}",
                      f"ds_read_b64_tr_b16 {vr(b+8,2)}, v{reg} offset:{wo}",
                      f"ds_read_b64_tr_b16 {vr(b+10,2)}, v{reg} offset:{wo+512}",
                      f"ds_read_b128 {vr(b+4,4)}, v{aX+s} offset:{L_X + c*8192 + 4096}"]
        else:
            p = (c - 8) >> 1
            for s in range(2):
                b = SET[c & 1] + 16 * s
                xs = ((c - 8) & 1) * 2 + s
                w0, w1 = off + 2 * var * 4096 + s * 2048, off + (2 * var + 1) * 4096 + s * 2048
                o += [f"ds_read_b128 {vr(b,4)}, v{aX+xs} offset:{L_X + p*8192}",
                      f"ds_read_b64_tr_b16 {vr(b+8,2)}, v{reg} offset:{w0}",
                      f"ds_read_b64_tr_b16 {vr(b+10,2)}, v{reg} offset:{w0+512}",
                      f"ds_read_b128 {vr(b+4,4)}, v{aX+xs} offset:{L_X + p*8192 + 4096}",
                      f"ds_read_b64_tr_b16 {vr(b+12,2)}, v{reg} offset:{w1}",
                      f"ds_read_b64_tr_b16 {vr(b+14,2)}, v{reg} offset:{w1+512}"]
        return o

    def mfmas(c):
        if c < 0:
            return []
        o = []
        ct_orient = (var == 0) if c < 8 else (var == 1)
        if c < 8:
            items = [(s, 0, tt, SET[c & 1] + 12 * s) for s in range(4) for tt in range(2)]
        else:
            items = [(s, ty, tt, SET[c & 1] + 16 * s) for s in range(2) for ty in range(2) for tt in range(2)]
            if c == 23:
                items.sort(key=lambda x: x[1])
        for s, ty, tt, b in items:
            acc = (ACC1 + 16 * tt) if c < 8 else ACC2[(ty, tt)]
            X, W = vr(b + 4 * tt, 4), vr(b + 8 + 4 * ty, 4)
            A, B = (W, X) if ct_orient else (X, W)
            zero = s == 0 and (c == 0 or (c == 8 and ty != phi_ty))
            o.append(f"v_mfma_f32_32x32x16_bf16 {vr(acc,16)}, {A}, {B}, {'0' if zero else vr(acc,16)}")
        return o

    GF, GA, aG, aGb = 176, 184, 0, 11

    def gate_reads(c):
        return [f"s_add_u32 s{sT0}, s{sROT}, {c}", f"s_and_b32 s{sT0}, s{sT0}, 7", f"s_lshl_b32 s{sT0}, s{sT0}, 7",
                f"v_add_u32 v{aG}, s{sT0}, v{aGb}", f"s_mov_b64 exec, {sp(sGM)}",
                f"ds_read_b128 {vr(GF,4)}, v{aG}", f"ds_read_b128 {vr(GF+4,4)}, v{aG} offset:32", "s_mov_b64 exec, -1"]

    def gate_mfmas(c):
        return [f"v_mfma_f32_16x16x32_bf16 {vr(GA+4*tt,4)}, {vr(GF+4*k,4)}, "
                f"{vr(SET[c & 1] + 12*(2*var+k) + 4*tt,4)}, {vr(GA+4*tt,4)}" for k in range(2) for tt in range(2)]

    def gate_park():
        return [f"v_mov_b32 v0, v{GA}", f"v_mov_b32 v11, v{GA+1}", f"v_mov_b32 v2, v{GA+4}", f"v_mov_b32 v3, v{GA+5}"]

    def gate_write():
        return [f"v_lshlrev_b32 v4, 2, v{A_LANE}", f"v_add_u32 v4, {L_GP + 256*var}, v4", "s_mov_b64 exec, 0xffff",
                "ds_write_b32 v4, v0", "ds_write_b32 v4, v11 offset:64",
                "ds_write_b32 v4, v2 offset:128", "ds_write_b32 v4, v3 offset:192", "s_mov_b64 exec, -1"]

    srd_words(g, SRD_SIZES)
    x_read_addrs(g, aX)
    g.e(f"""v_bfe_u32 v1, v{A_LANE}, 2, 2
    v_lshrrev_b32 v2, 5, v{A_LANE}
    v_lshl_add_u32 v1, v2, 3, v1
    v_lshlrev_b32 v{aW0}, 7, v1
    v_bfe_u32 v1, v{A_LANE}, 3, 1
    s_and_b32 s{sT0}, s{sWAVE}, 1
    v_xor_b32 v1, s{sT0}, v1
    v_bfe_u32 v2, v{A_LANE}, 4, 1
    v_lshl_add_u32 v1, v1, 1, v2
    v_lshlrev_b32 v1, 5, v1
    v_and_b32 v2, 3, v{A_LANE}
    v_lshl_add_u32 v1, v2, 3, v1
    v_add_u32 v{aW0}, v{aW0}, v1
    v_add_u32 v{aW0}, {L_RING}, v{aW0}
    v_add_u32 v{aW1}, 65536, v{aW0}""")
    if var == 0:
        g.e(f"""v_and_b32 v1, 0x33, v{A_LANE}
        v_bfe_u32 v2, v{A_LANE}, 2, 1
        v_lshl_or_b32 v1, v2, 3, v1
        v_bfe_u32 v2, v{A_LANE}, 3, 1
        v_lshl_or_b32 v1, v2, 2, v1
        v_lshlrev_b32 v{vST}, 4, v1""")
    else:
        g.e(f"""v_bfe_u32 v1, v{A_LANE}, 4, 1
        v_mul_u32_u24 v1, {HEAD_STRIDE}, v1
        v_lshrrev_b32 v2, 5, v{A_LANE}
        v_lshl_add_u32 v1, v2, 8, v1
        v_and_b32 v2, 15, v{A_LANE}
        v_lshl_add_u32 v1, v2, 4, v1
        v_add_u32 v{vST}, 1024, v1""")
    for i in range(32):
        g.e(f"v_mov_b32 v{144+i}, {f32(1e-6)}")
    for i in range(0, 16, 2):
        g.e(f"v_mov_b64 {vr(GF+i,2)}, 0")
    g.e(f"""s_mov_b32 s{sGM}, 0x20001
    s_mov_b32 s{sGM+1}, 0x20001
    v_lshrrev_b32 v{aGb}, 5, v{A_LANE}
    v_lshlrev_b32 v{aGb}, 4, v{aGb}
    v_add_u32 v{aGb}, {L_GATE + 64*var}, v{aGb}""")
    g.e(f"""s_mov_b32 s{sC1}, {f32(LOG2E)}
    s_mov_b32 s{sC1+1}, {f32(LOG2E)}
    s_mov_b32 s{sC2}, {f32(0.25*LOG2E)}
    s_mov_b32 s{sC2+1}, {f32(0.25*LOG2E)}
    s_mov_b32 s{sC3}, {f32(1e-6)}
    v_mov_b32 v{PHI_C}, {f32(-1e-6*LOG2E)}
    v_mov_b32 v{PHI_C+1}, {f32(-1e-6*LOG2E)}""")
    att_const_setup(g)
    g.e("s_waitcnt lgkmcnt(0)")
    if g.opt.get("diag"):
        g.e(f"s_mov_b32 s{sST0}, s{sSTAMP}")
    l = g.label("st")
    g.e("v_mov_b32 v13, 0\nv_mov_b32 v12, 0")
    if var == 0:
        g.e(f"""s_cmp_eq_u32 s{sWAVE}, 0
        s_cbranch_scc0 {l}
        v_mov_b32 v2, 0
        v_mov_b32 v3, {L_BAD}
        ds_write_b32 v3, v2
        ds_write_b32 v3, v2 offset:4
        ds_write_b32 v3, v2 offset:8
        s_cmp_eq_u32 s2, 0
        s_cbranch_scc0 {l}
        s_memrealtime {sp(sP)}
        s_waitcnt lgkmcnt(0)
        s_or_b32 s{sP}, s{sP}, 1
        v_mov_b32 v1, s{sP}
        buffer_store_dword v1, v2, {srd(SRD_DBG)}, 0 offen sc1
        {l}:""")
    else:
        g.e(f"""s_cmp_eq_u32 s{sWAVE}, 3
        s_cbranch_scc0 {l}
        s_cmp_lt_u32 s{sRB}, 4
        s_cbranch_scc0 {l}
        s_lshl_b32 s{sT0}, s{sQUAD}, 2
        s_add_u32 s{sT0}, s{sT0}, s{sRB}
        s_lshl_b32 s{sT0}, s{sT0}, 11
        s_add_u32 s{sT0}, s{sT0}, {WS_P}
        v_mov_b32 v16, 0
        v_mov_b32 v17, 0
        v_mov_b32 v18, 0
        v_mov_b32 v19, 0
        buffer_store_dwordx4 v[16:19], v{A_VK}, {srd(SRD_WS)}, s{sT0} offen sc1
        buffer_store_dwordx4 v[16:19], v{A_VK}, {srd(SRD_WS)}, s{sT0} offen offset:1024 sc1
        {l}:""")
    prefetch_touch(g, var, 0)
    g.stamp(1)

    if g.opt.get("cprio", 1):
        g.e("s_setprio 1")
    flagc = g.opt.get("flagc", 16)
    carry = []
    for c in range(24):
        if c == flagc:
            g.e("s_waitcnt vmcnt(0)")
            nonce_check(g, 12, 13)
        g.e("s_barrier")
        if c == 0:
            g.stamp(2)
        if g.opt.get("kst") and c in g.opt["kst"]:
            i = g.opt["kst"].index(c)
            g.cstamp(8 + 2 * i)
            g.stamp(9 + 2 * i)
        rd = reads(c)
        m = mfmas(c - 1)
        extra = []
        eper = g.opt.get("eper", 2)
        e0 = g.opt.get("e0", 9)
        if e0 <= c < e0 + 4 // eper:
            extra = sum(epilogue_a(var, ACC1, vST)[(c - e0) * eper:(c - e0 + 1) * eper], [])
        seq = list(carry)
        if 1 <= c <= 8:
            seq += gate_mfmas(c - 1)
        if c == 9:
            seq += gate_park()
        per = (len(rd) + 3) // 4
        for i in range(7):
            if i == 4 and c < 8:
                seq += gate_reads(c)
            if i < 4:
                seq += rd[i * per:(i + 1) * per]
            if i < len(m):
                seq.append(m[i])
            if extra and i >= 3:
                k = (len(extra) + 3) // 4
                seq += extra[(i - 3) * k:(i - 2) * k]
        carry = m[7:8]
        g.e("\n".join(seq))
        if c == 9:
            g.stamp(3)
        if c == 2:
            prefetch_touch(g, var, 1)
        if c == g.opt.get("noncec", 8):
            g.e(f"buffer_load_dword v12, v13, {srd(SRD_DBG)}, 0 offen sc1")
        if c == flagc and var == 0:
            l = g.label("kf")
            g.e(f"""s_cmp_eq_u32 s{sWAVE}, 0
            s_cbranch_scc0 {l}
            s_lshl_b32 s{sT0}, s{sQUAD}, 5
            s_add_u32 s{sT0}, s{sT0}, s{sRB}
            s_lshl_b32 s{sT0}, s{sT0}, 7
            s_add_u32 s{sT0}, s{sT0}, {WS_FKV}
            s_mov_b64 exec, 1
            buffer_store_dword v12, v13, {srd(SRD_WS)}, s{sT0} offen sc1
            s_mov_b64 exec, -1
            {l}:""")
        g.e("s_waitcnt lgkmcnt(0)")
    g.e("\n".join(carry + mfmas(23)[:3]))
    g.stamp(4)
    g.e(f"s_barrier\ns_setprio {g.opt.get('eprio', 0)}")
    rest = mfmas(23)[3:]
    g.e("\n".join(rest[:1] + gate_write() + rest[1:]))
    epilogue_b(g, var, ACC2)
    if var == 0:
        g.e("s_branch L_attn")


def prefetch_touch(g, var, when):
    mask = g.opt.get("touch", 1)
    l = g.label("pt")
    if var == 0 and when == 0 and mask & 1:
        g.e(f"""s_cmp_eq_u32 s{sWAVE}, 1
        s_cbranch_scc0 {l}
        s_getpc_b64 {sp(sP)}
        L_pc:
        s_sub_u32 s{sP}, s{sP}, L_pc-{KNAME}
        s_subb_u32 s{sP+1}, s{sP+1}, 0
        s_lshr_b32 s{sT0}, s2, 3
        s_and_b32 s{sT0}, s{sT0}, 31
        s_lshl_b32 s{sT0}, s{sT0}, 10
        v_and_b32 v1, 7, v{A_LANE}
        v_lshl_add_u32 v1, v1, 7, s{sT0}
        v_min_u32 v1, L_codeend-{KNAME}-4, v1
        global_load_dword v3, v1, {sp(sP)}
        {l}:""")
    if var == 1 and when == g.opt.get("twhen", 0) and mask & 6:
        l3 = g.label("pt3")
        g.e(f"""s_and_b32 s{sT0}, s{sRB}, 15
        s_lshl_b32 s{sT0}, s{sT0}, 5
        v_and_b32 v1, 31, v{A_LANE}
        v_add_u32 v1, s{sT0}, v1
        v_lshrrev_b32 v2, 5, v{A_LANE}
        s_lshl_b32 s{sT1}, s{sQUAD}, 7
        s_cmp_eq_u32 s{sWAVE}, 2
        s_cbranch_scc0 {l3}""")
        if mask & 2:
            g.e(f"""v_mul_u32_u24 v1, 3072, v1
            v_lshl_add_u32 v2, v2, 10, v1
            buffer_load_dword v3, v2, {srd(SRD_WB)}, s{sT1} offen sc1
            s_mov_b64 exec, 0xffffffff
            buffer_load_dword v3, v1, {srd(SRD_WB)}, s{sT1} offen offset:2048 sc1
            buffer_load_dword v3, v1, {srd(SRD_WA)}, s{sT1} offen sc1
            s_mov_b64 exec, -1""")
        g.e(f"s_branch {l}\n{l3}:")
        if mask & 4:
            g.e(f"""v_lshlrev_b32 v1, 10, v1
            buffer_load_dword v3, v1, {srd(SRD_OA)}, s{sT1} offen
            buffer_load_dword v3, v1, {srd(SRD_OB)}, s{sT1} offen""")
        g.e(f"{l}:")


def epilogue_a(var, ACC1, vST):
    T = 176
    o = [f"s_lshl_b32 s{sT0}, s{sQUAD}, 2", f"s_and_b32 s{sT1}, s{sWAVE}, 1", f"s_lshl_b32 s{sT1}, s{sT1}, 1",
         f"s_add_u32 s{sT0}, s{sT0}, s{sT1}", f"s_mul_i32 s{sT0}, s{sT0}, {HEAD_STRIDE}",
         f"s_lshl_b32 s{sT1}, s{sRB}, 12", f"s_add_u32 s{sT0}, s{sT0}, s{sT1}"]
    if WS_KV:
        o.append(f"s_add_u32 s{sT0}, s{sT0}, {WS_KV}")
    o.append(f"s_add_u32 s{sT1}, s{sT0}, {HEAD_STRIDE}")
    o += [f"s_mov_b32 s{sT4}, s{sT0}", f"s_mov_b32 s{sT5}, s{sT1}"]
    parts = []
    for tt in range(2):
        for hlf in range(2):
            if tt or hlf:
                parts.append(o)
                o = []
            d = T + 8 * tt + 4 * hlf
            if var == 0:
                a = ACC1 + 16 * tt + 8 * hlf
                o += [f"v_mul_f32 v{a+i}, s{sC2}, v{a+i}" for i in range(8)]
            o += cvt_list(d, ACC1 + 16 * tt + 8 * hlf, 8)
            if var == 0:
                o.append(f"buffer_store_dwordx4 {vr(d,4)}, v{vST}, {srd(SRD_WS)}, s{sT4+hlf} offen offset:{tt*2048} sc1")
            else:
                o.append(f"buffer_store_dwordx4 {vr(d,4)}, v{vST}, {srd(SRD_WS)}, s{sT4} offen offset:{tt*2048+hlf*512} sc1")
    return parts + [o]


def epilogue_b(g, var, ACC2):
    if var == 1:
        g.e(f"""s_and_b32 s{sT0}, s{sWAVE}, 1
        s_lshl_b32 s{sT0}, s{sT0}, 12
        s_add_u32 s{sT0}, s{sT0}, {L_STASH}
        v_add_u32 v3, s{sT0}, v{A_VK}
        s_nop 1""")
        for ty in range(2):
            for tt in range(2):
                a = ACC2[(ty, tt)]
                if ty == 1:
                    phi_block(g, a, 16)
                d = 16 + 16 * ty + 8 * tt
                cvt_block(g, d, a, 16)
                for i in range(2):
                    g.e(f"ds_write_b128 v3, {vr(d+4*i,4)} offset:{ty*8192 + (i*2+tt)*1024}")
            lds_count(g, L_PQC if ty else L_QC)
            if ty == 0:
                att_prefetch(g, KD, 2)
        zero_o(g)
    else:
        att_prefetch(g, KD, 2)
        PK, VF, ONE, D, Z = 16, 32, 140, 64, 80
        for tt in range(2):
            cvt_block(g, VF + 8 * tt, ACC2[(1, tt)], 16)
        for i in range(4):
            g.e(f"v_mov_b32 v{ONE+i}, 0x3f803f80")
        for tt in range(2):
            phi_block(g, ACC2[(0, tt)], 16)
            cvt_block(g, PK + 8 * tt, ACC2[(0, tt)], 16)
            g.e("s_nop 1")
            for blk in range(2):
                k = 2 * tt + blk
                cD = "0" if k == 0 else vr(D, 16)
                cZ = "0" if k == 0 else vr(Z, 16)
                g.e(f"v_mfma_f32_32x32x16_bf16 {vr(D,16)}, {vr(PK+4*k,4)}, {vr(VF+4*k,4)}, {cD}")
                g.e(f"v_mfma_f32_32x32x16_bf16 {vr(Z,16)}, {vr(ONE,4)}, {vr(PK+4*k,4)}, {cZ}")
        g.e("s_nop 10")
        for j in range(8):
            g.e(f"v_cndmask_b32 v{A_ATD+j}, v{D+j}, v{D+8+j}, {sp(sHMASK)}")
        g.e(f"v_mov_b32 v{A_ATD+8}, v{Z}")
        zero_o(g)
        lds_count(g, L_PQC)


def att_step(g, t, kd, useC, hi=None, skip0=False):
    p, q, r = t % kd, (t + 1) % kd, (t - 1) % kd
    SA, SB = A_SA, A_SB
    ca, cb = (vr(A_CA, 16), vr(A_CB, 16)) if useC else ("0", "0")

    def ex(b, i0, i1):
        for i in range(i0, i1):
            g.e(f"v_exp_f32 v{b+i}, v{b+i}")

    def sm(o, v, s):
        g.e(f"v_smfmac_f32_32x32x32_bf16 {vr(o,16)}, {vr(v,4)}, {vr(s,8)}, v{A_IDX}")

    g.e("s_setprio 1")
    ex(SA, 0, 1)
    g.e("s_setprio 2")
    ex(SA, 1, 2)
    if not skip0:
        sm(A_OB, A_V1 + 4 * r, SB + 8)
    ex(SA, 2, 5)
    g.e(f"v_mfma_f32_32x32x16_bf16 {vr(SB,16)}, {vr(A_K+4*p,4)}, {vr(A_Q+4,4)}, {cb}")
    ex(SA, 5, 10)
    sm(A_OA, A_V0 + 4 * p, SA)
    ex(SA, 10, 16)
    ex(SB, 0, 2)
    sm(A_OA, A_V1 + 4 * p, SA + 8)
    ex(SB, 2, 5)
    g.e(f"v_mfma_f32_32x32x16_bf16 {vr(SA,16)}, {vr(A_K+4*q,4)}, {vr(A_Q,4)}, {ca}")
    ex(SB, 5, 10)
    sm(A_OB, A_V0 + 4 * p, SB)
    ex(SB, 10, 16)
    if hi:
        g.e(f"s_setprio {g.opt.get('hprio', 3)}")
        hi()
    g.e("s_setprio 0")


def wo_dma(g, n):
    if n == 0:
        g.e(f"""s_lshl_b32 s{sWOM}, s{sWAVE}, 13
        s_lshl_b32 s{sWOS}, s{sWAVE}, 16
        s_lshl_b32 s{sT1}, s{sQUAD}, 7
        s_add_u32 s{sWOS}, s{sWOS}, s{sT1}
        s_mov_b32 s{SRD_W2+2}, 0x80000""")
    g.e(f"""s_add_u32 s{sT0}, s{sRB}, {n}
    s_and_b32 s{sT1}, s{sT0}, 7
    s_bitcmp1_b32 s{sT0}, 3
    s_cselect_b32 s{SRD_W2}, s{SRD_OA}, s{SRD_OB}
    s_cselect_b32 s{SRD_W2+1}, s{SRD_OA+1}, s{SRD_OB+1}
    s_cselect_b32 s{sT0}, {L_WOA}, {L_WOB}
    s_add_u32 s{sT0}, s{sT0}, s{sWOM}
    s_lshl_b32 s{sT2}, s{sT1}, 10
    s_add_u32 m0, s{sT0}, s{sT2}
    s_lshl_b32 s{sT1}, s{sT1}, 13
    s_add_u32 s{sT1}, s{sT1}, s{sWOS}
""")
    if g.opt.get("wom") == 1:
        return
    g.e(f"buffer_load_dwordx4 v{A_VO}, {srd(SRD_W2)}, s{sT1} offen lds")
    g.vm_issue("wo")


def o_store_addr(g, base, dst):
    g.e(f"""s_and_b32 s{sT0}, s{sTILE}, 7
    s_xor_b32 s{sT0}, s{sT0}, s{sQUAD}
    s_lshl_b32 s{sT0}, s{sT0}, 2
    s_add_u32 s{sT0}, s{sT0}, s{sHD}
    s_lshl_b32 s{sT0}, s{sT0}, 10
    s_lshl_b32 s{dst}, s{sTILE}, 15
    s_add_u32 s{dst}, s{dst}, s{sT0}
    s_add_u32 s{dst}, s{dst}, {base}""")


def o_flag_store(g, base):
    g.e(f"""s_lshl_b32 s{sT0}, s{sTILE}, 3
    s_add_u32 s{sT0}, s{sT0}, s{sQUAD}
    s_lshl_b32 s{sT0}, s{sT0}, 7
    s_lshl_b32 s{sT1}, s{sHD}, 2
    s_add_u32 s{sT0}, s{sT0}, s{sT1}
    s_add_u32 s{sT0}, s{sT0}, {base}
    s_mov_b64 exec, 1
    buffer_store_dword v{A_NV}, v{A_ZV}, {srd(SRD_WS)}, s{sT0} offen sc1
    s_mov_b64 exec, -1""")


def o_poll_addr(g):
    g.e(f"""v_min_u32 v{A_T}, 7, v{A_LANE}
    v_lshrrev_b32 v{A_T+1}, 2, v{A_T}
    v_and_b32 v{A_T}, 3, v{A_T}
    v_lshlrev_b32 v{A_T}, 2, v{A_T}
    v_lshl_add_u32 v{A_PA}, v{A_T+1}, 7, v{A_T}
    s_lshl_b32 s{sT0}, s{sTILE}, 3
    s_lshl_b32 s{sT1}, s{sHD}, 1
    s_add_u32 s{sT0}, s{sT0}, s{sT1}
    s_lshl_b32 s{sT0}, s{sT0}, 7
    v_add_u32 v{A_PA}, s{sT0}, v{A_PA}""")


def o_frag_addr(g, base):
    for u in range(2):
        g.e(f"""s_lshl_b32 s{sT0}, s{sHD}, 1
        s_add_u32 s{sT0}, s{sT0}, {u}
        s_and_b32 s{sT1}, s{sTILE}, 7
        s_xor_b32 s{sT0}, s{sT0}, s{sT1}
        s_lshl_b32 s{sT0}, s{sT0}, 12
        s_lshl_b32 s{sT1}, s{sTILE}, 15
        s_add_u32 s{sT0}, s{sT0}, s{sT1}
        s_add_u32 s{sT4+u}, s{sT0}, {base}""")


def o_frag_load(g, dst, i):
    g.e(f"buffer_load_dwordx4 {vr(dst+4*i,4)}, v{A_VK}, {srd(SRD_WS)}, s{sT4+(i>>2)} offen offset:{(i&3)*1024} sc1")


def hooks(g):
    fp_poll = f"buffer_load_dword v{A_POLL}, v{A_PA}, {srd(SRD_WS)}, 0 offen sc1"
    fob_poll = f"buffer_load_dword v{A_POLL}, v{A_PA}, {srd(SRD_WS)}, s{sAT} offen sc1"
    H, L = {}, {}

    skip = g.opt.get("skip", "").split("+")

    def at(d, t, f, name=None):
        assert 0 <= t <= 30, t
        if (name or getattr(f, "__name__", "")) not in skip:
            d.setdefault(t, []).append(f)
    ta = g.opt.get("ta", 3)
    tf = g.opt.get("tf", 10)
    tp = g.opt.get("tp", 13)
    tb = g.opt.get("tb", 25)
    tw = g.opt.get("tw", 6)

    wper = g.opt.get("wper", 1)
    for n in range(16):
        at(L, tw + n // wper, lambda n=n: wo_dma(g, n), 'wo')

    def atomics(part):
        l0, l1 = g.label("at"), g.label("atj")
        if part == 0:
            g.e(f"""s_lshl_b32 s{sAT}, s{sQUAD}, 1
            s_add_u32 s{sAT}, s{sAT}, s{sWAVE}
            s_lshl_b32 s{sAT}, s{sAT}, 12
            s_add_u32 s{sAT}, s{sAT}, {WS_P}""")
        g.e(f"s_cmp_lt_u32 s{sWAVE}, 2\ns_cbranch_scc0 {l0}")
        for j in range(aper * part, aper * part + aper):
            if j < 8:
                g.e(f"buffer_atomic_add_f32 v{A_ATD+j}, v{A_ATA+1}, {srd(SRD_WS)}, s{sAT} offen offset:{j*128}")
            else:
                g.e(f"""s_mov_b64 exec, 0xffffffff
                buffer_atomic_add_f32 v{A_ATD+8}, v{A_ATA}, {srd(SRD_WS)}, s{sAT} offen offset:1024""")
        g.e(f"s_branch {l1}\n{l0}:\ns_mov_b64 exec, 1")
        for j in range(aper):
            g.e(f"buffer_load_dword v0, v{A_PA}, {srd(SRD_WS)}, 0 offen")
        g.e(f"{l1}:\ns_mov_b64 exec, -1")
        g.vm_issue("atom", aper)
    aper = g.opt.get("aper", 9)
    for i in range(9 // aper):
        at(L, ta + i, lambda i=i: atomics(i), 'atomics')

    def poison():
        o_store_addr(g, WS_OA, sT2)
        g.e(f"buffer_store_dwordx4 {vr(A_DN,4)}, v{A_VK}, {srd(SRD_WS)}, s{sT2} offen sc1")
        g.vm_issue("poison")
    at(L, tf + 1, poison)

    def fp_flag():
        g.vm_wait("atom")
        g.vm_issue("fp", 1, True)
        l = g.label("fp")
        g.e(f"""s_cmp_lt_u32 s{sWAVE}, 2
        s_cbranch_scc0 {l}
        s_lshl_b32 s{sT0}, s{sQUAD}, 1
        s_add_u32 s{sT0}, s{sT0}, s{sWAVE}
        s_lshl_b32 s{sT0}, s{sT0}, 5
        s_add_u32 s{sT0}, s{sT0}, s{sRB}
        s_lshl_b32 s{sT0}, s{sT0}, 7
        s_add_u32 s{sT0}, s{sT0}, {WS_FP}
        s_mov_b64 exec, 1
        buffer_store_dword v{A_NV}, v{A_ZV}, {srd(SRD_WS)}, s{sT0} offen sc1
        s_mov_b64 exec, -1
        {l}:""")
    at(L, tf, fp_flag)

    def fp_poll_issue():
        g.e(f"{fp_poll}\nds_read_b32 v{A_T}, v{A_T+1}")
        g.vm_issue("fppoll")
    at(L, tp, fp_poll_issue)

    def fp_check():
        lds_wait(g, A_T + 1, A_T, 4, "pq")
        g.vm_wait("fppoll")
        spin_check(g, fp_poll, "fpw")
    at(H, tp + 2, fp_check)

    def kv_loads(part):
        if part == 0:
            g.e(f"""ds_read_b128 {vr(A_PQ,4)}, v{A_T+2} offset:8192
            ds_read_b32 v{A_G}, v{A_T+3}
            ds_read_b32 v{A_G1}, v{A_T+3} offset:256
            s_lshl_b32 s{sAT}, s{sQUAD}, 2
            s_add_u32 s{sAT}, s{sAT}, s{sHD}
            s_lshl_b32 s{sAT}, s{sAT}, 11
            s_add_u32 s{sAT}, s{sAT}, {WS_P}""")
        g.e(f"s_mov_b64 exec, {sp(sVMASK)}")
        js = ((0, 1, 2), (3, 4, 5, 6), (7,))[part]
        for j in js:
            g.e(f"buffer_load_dword v{A_KVL+j}, v{A_KVA}, {srd(SRD_WS)}, s{sAT} offen offset:{j*128} sc1")
        if part == 2:
            g.e(f"""s_not_b64 exec, {sp(sVMASK)}
            buffer_load_dwordx4 {vr(A_KVL,4)}, v{A_KVA}, {srd(SRD_WS)}, s{sAT} offen sc1
            buffer_load_dwordx4 {vr(A_KVL+4,4)}, v{A_KVA}, {srd(SRD_WS)}, s{sAT} offen offset:32 sc1""")
        g.e("s_mov_b64 exec, -1")
        g.vm_issue("kvl", len(js) + (2 if part == 2 else 0))
    for i in range(3):
        at(L, tp + 2 + i, lambda i=i: kv_loads(i), 'kv_loads')

    def ob_mfma():
        g.vm_wait("kvl")
        cvt_block(g, A_T, A_KVL, 8)
        g.e(f"""s_waitcnt lgkmcnt(0)
        v_add_f32 v{A_G}, v{A_G}, v{A_G1}
        v_mul_f32 v{A_G}, {f32(-LOG2E)}, v{A_G}
        v_mfma_f32_32x32x16_bf16 {vr(A_DN,16)}, {vr(A_T,4)}, {vr(A_PQ,4)}, 0
        v_exp_f32 v{A_G}, v{A_G}""")
        o_poll_addr(g)
        g.e(f"""v_add_f32 v{A_G}, 1.0, v{A_G}
        v_rcp_f32 v{A_G}, v{A_G}""")
    at(H, tp + 6, ob_mfma)

    def ob_fin():
        g.e(f"""v_add_f32 v{A_T}, {f32(1e-6)}, v{A_DN+8}
        v_rcp_f32 v{A_T}, v{A_T}
        v_sub_f32 v{A_G1}, 1.0, v{A_G}
        v_mul_f32 v{A_T}, v{A_G1}, v{A_T}""")
        for j in range(0, 8, 2):
            g.e(f"v_pk_mul_f32 {vr(A_DN+j,2)}, {vr(A_DN+j,2)}, {vr(A_T,2)} op_sel_hi:[1,0]")
        cvt_block(g, A_DN + 12, A_DN, 8)
    at(H, tp + 7, ob_fin)

    def ob_store():
        o_store_addr(g, WS_OB, sT2)
        g.e(f"buffer_store_dwordx4 {vr(A_DN+12,4)}, v{A_VK}, {srd(SRD_WS)}, s{sT2} offen sc1")
        g.vm_issue("obst")
    at(L, tp + 7, ob_store)

    def fob_flag():
        g.vm_wait("obst")
        o_flag_store(g, WS_FOB)
        g.vm_issue("fob")
    at(L, tp + 9, fob_flag)

    def fob_poll_issue():
        g.e(f"s_mov_b32 s{sAT}, {WS_FOB}\n{fob_poll}")
        o_frag_addr(g, WS_OB)
        g.vm_issue("fobpoll")
    at(L, tb, fob_poll_issue)

    def fob_check():
        g.vm_wait("fobpoll")
        spin_check(g, fob_poll, "fob")
    at(H, tb + 2, fob_check)

    def obf_loads(js):
        for j in js:
            o_frag_load(g, A_OBF, j)
        g.vm_issue("obf", len(js))
    for i, js in enumerate(((0, 1, 2), (3, 4, 5), (6, 7))):
        at(L, tb + 2 + i, lambda js=js: obf_loads(js), 'obf')

    def tail_addrs():
        WB, WA = A_WB, A_WB + 2
        g.e(f"""v_bfe_u32 v1, v{A_LANE}, 2, 2
        v_lshrrev_b32 v2, 5, v{A_LANE}
        v_lshl_add_u32 v1, v2, 2, v1
        v_lshlrev_b32 v{WB}, 7, v1
        v_bfe_u32 v1, v{A_LANE}, 3, 1
        s_lshr_b32 s{sT0}, s{sHD}, 1
        v_xor_b32 v1, s{sT0}, v1
        v_bfe_u32 v2, v{A_LANE}, 4, 1
        s_and_b32 s{sT1}, s{sHD}, 1
        v_xor_b32 v2, s{sT1}, v2
        v_lshl_add_u32 v1, v1, 1, v2
        v_lshlrev_b32 v1, 5, v1
        v_and_b32 v2, 3, v{A_LANE}
        v_lshl_add_u32 v1, v2, 3, v1
        v_add_u32 v{WB}, v{WB}, v1
        s_lshl_b32 s{sT0}, s{sHD}, 14
        v_add_u32 v{WB}, s{sT0}, v{WB}
        v_xor_b32 v{WB+1}, 64, v{WB}
        v_add_u32 v{WA}, {L_WOA}, v{WB}
        v_add_u32 v{WA+1}, {L_WOA}, v{WB+1}""")
    g.tail_addrs = tail_addrs

    def tail_addrs2():
        for j in range(1, 4):
            g.e(f"""s_xor_b32 s{sT0}, s{sWAVE}, {j}
            s_mul_i32 s{sT0}, s{sT0}, 6144
            s_add_u32 s{sT0}, s{sT0}, {L_RED + (j-1)*2048}
            v_add_u32 v{A_RA+j}, s{sT0}, v{A_VK}""")
        g.e(f"""s_mul_i32 s{sT0}, s{sWAVE}, 6144
        s_add_u32 s{sT0}, s{sT0}, {L_RED}
        v_add_u32 v{A_RA}, s{sT0}, v{A_VK}
        v_and_b32 v1, 31, v{A_LANE}
        v_lshlrev_b32 v1, 10, v1
        v_lshrrev_b32 v2, 5, v{A_LANE}
        v_lshl_add_u32 v1, v2, 4, v1
        s_lshl_b32 s{sT2}, s{sTILE}, 15
        s_lshl_b32 s{sT0}, s{sQUAD}, 7
        s_add_u32 s{sT2}, s{sT2}, s{sT0}
        s_lshl_b32 s{sT0}, s{sHD}, 5
        s_add_u32 s{sT2}, s{sT2}, s{sT0}
        v_add_u32 v{A_OUTA}, s{sT2}, v1""")
    g.tail_addrs2 = tail_addrs2
    return H, L


def outproj_part(g, frags, wbase_reg, first, mid=None, midat=8):
    def rd(i, st):
        for a in range(2):
            for u in range(2):
                g.e(f"ds_read_b64_tr_b16 {vr(A_WF+8*st+4*a+2*u,2)}, v{wbase_reg+a} offset:{i*2048+u*1024}")
    rd(0, 0)
    for i in range(8):
        if mid and i == midat:
            mid()
        if i < 7:
            rd(i + 1, (i + 1) & 1)
        if not first:
            g.e(f"""s_waitcnt vmcnt({7-i})
            L_oa_chk{i}:
            v_cmp_eq_u32 vcc, -1, v{frags+4*i}
            s_cbranch_vccnz L_oa_retry{i}
            L_oa_go{i}:""")
        g.e(f"s_waitcnt lgkmcnt({4 if i < 7 else 0})")
        for a in range(2):
            acc = vr(A_ACC + 16 * a, 16)
            c = "0" if (first and i == 0) else acc
            g.e(f"v_mfma_f32_32x32x16_bf16 {acc}, {vr(A_WF+8*(i&1)+4*a,4)}, {vr(frags+4*i,4)}, {c}")
    if mid and midat == 8:
        mid()


def oa_retry_stubs(g):
    for i in range(8):
        g.e(f"""L_oa_retry{i}:
        s_sub_u32 s{sSPIN}, s{sSPIN}, 1
        s_cbranch_scc1 L_oa_go{i}
""")
        for j in range(i, 8):
            o_frag_load(g, A_SA, j)
        g.e(f"s_waitcnt vmcnt(0)\ns_branch L_oa_chk{i}")


def attention(g):
    g.att = True
    g.e(f"""L_attn:
    v_mov_b32 v3, {L_QC}
    ds_read_b32 v{A_T}, v3""")
    g.stamp(5)
    g.vm_reset()
    g.vm_issue(0, 2)
    g.vm_issue(1, 3)
    g.vm_issue(2, kv_group(g, 2, KD))
    g.e(f"""s_lshl_b32 s{sT0}, s{sHD}, 11
    s_lshl_b32 s{sT1}, s{sKH}, 10
    s_add_u32 s{sT2}, s{sT0}, s{sT1}
    s_add_u32 s{sT2}, s{sT2}, {L_STASH}
    s_xor_b32 s{sT3}, s{sT2}, 1024
    v_add_u32 v{A_T+2}, s{sT2}, v{A_VK}
    v_add_u32 v2, s{sT3}, v{A_VK}""")
    lds_wait(g, 3, A_T, 2, "q")
    g.e(f"""ds_read_b128 {vr(A_Q,4)}, v{A_T+2}
    ds_read_b128 {vr(A_Q+4,4)}, v2
    v_and_b32 v3, 31, v{A_LANE}
    v_lshlrev_b32 v{A_PA}, 7, v3
    v_lshlrev_b32 v3, 2, v3
    s_lshl_b32 s{sT0}, s{sKH}, 7
    s_add_u32 s{sT0}, s{sT0}, {L_GP}
    v_add_u32 v{A_T+3}, s{sT0}, v3
    s_lshl_b32 s{sT0}, s{sQUAD}, 1
    s_lshr_b32 s{sT1}, s{sHD}, 1
    s_add_u32 s{sT0}, s{sT0}, s{sT1}
    s_lshl_b32 s{sT0}, s{sT0}, 12
    s_add_u32 s{sT0}, s{sT0}, {WS_FP}
    v_add_u32 v{A_PA}, s{sT0}, v{A_PA}
    v_mov_b32 v{A_NV}, s{sNONCE}
    v_mov_b32 v{A_ZV}, 0
    s_waitcnt vmcnt(3) lgkmcnt(0)
    v_mfma_f32_32x32x16_bf16 {vr(A_SA,16)}, {vr(A_K,4)}, {vr(A_Q,4)}, 0
    v_lshrrev_b32 v1, 5, v{A_LANE}
    v_and_b32 v2, 15, v{A_LANE}
    v_lshlrev_b32 v2, 2, v2
    v_lshl_add_u32 v2, v1, 6, v2
    v_lshlrev_b32 v1, 4, v1
    v_add_u32 v1, 1024, v1
    v_cndmask_b32 v{A_KVA}, v2, v1, {sp(sHMASK)}
    v_bfe_u32 v1, v{A_LANE}, 4, 1
    v_lshl_add_u32 v{A_ATA+1}, v1, 11, v2
    v_and_b32 v{A_ATA}, 0xffffffbf, v{A_ATA+1}
    v_mov_b32 v{A_T+1}, {L_PQC}
    v_mov_b64 {vr(A_DN,2)}, -1
    v_mov_b64 {vr(A_DN+2,2)}, -1""")
    g.stamp(6)
    g.cstamp(14)
    H, L = hooks(g)
    if g.opt.get("nohooks"):
        keep = g.opt.get("keep", [])
        keep = keep if isinstance(keep, list) else [keep]
        H, L = {}, {t: f for t, f in L.items() if t in keep}
    nxt = 3
    ast = g.opt.get("ast")
    for t in range(32):
        hi = (lambda t=t: [f() for f in H[t]]) if t in H else None
        if ast:
            def hi(t=t, h=hi):
                if h:
                    h()
                g.e(f"s_waitcnt lgkmcnt(0)\nv_writelane_b32 v104, s96, {t}\nv_writelane_b32 v105, s98, {t}")
            g.e("s_memtime s[96:97]\ns_memrealtime s[98:99]")
        att_step(g, t, KD, False, hi, t == 0)
        if t < 31:
            for _ in range(2):
                if nxt <= min(t + KD, 32):
                    g.vm_issue(nxt, kv_group(g, nxt, KD, v1only=(nxt == 32)))
                    nxt += 1
            for f in L.get(t, ()):
                f()
            g.vm_wait(t + 2)
    if not g.opt.get("nohooks"):
        g.vm_wait("wo", "obf")
    g.e(f"""s_nop 1
    v_smfmac_f32_32x32x32_bf16 {vr(A_OB,16)}, {vr(A_V1+4*(31%KD),4)}, {vr(A_SB+8,8)}, v{A_IDX}
    L_attn_done:""")
    if ast:
        g.e(f"""s_memtime s[96:97]
        s_memrealtime s[98:99]
        s_waitcnt lgkmcnt(0)
        v_writelane_b32 v104, s96, 32
        v_writelane_b32 v105, s98, 32
        s_lshl_b32 s{sT0}, s2, 3
        s_add_u32 s{sT0}, s{sT0}, s{sWAVE}
        s_lshl_b32 s{sT0}, s{sT0}, 9
        s_add_u32 s{sT0}, s{sT0}, {WS_DIAG}
        v_lshlrev_b32 v1, 2, v{A_LANE}
        buffer_store_dword v104, v1, {srd(SRD_WS)}, s{sT0} offen
        buffer_store_dword v105, v1, {srd(SRD_WS)}, s{sT0} offen offset:256
        s_waitcnt vmcnt(0)""")
    g.stamp(7)
    g.cstamp(15)
    l_ok = g.label("ok")
    g.e(f"""s_xor_b32 s{sT0}, s{sWAVE}, 4
    s_lshl_b32 s{sT1}, s{sT0}, 11
    s_add_u32 s{sT1}, s{sT1}, {L_STASH}
    v_add_u32 v1, s{sT1}, v{A_VK}
    s_lshl_b32 s{sT1}, s{sT0}, 8
    s_add_u32 s{sT1}, s{sT1}, {L_LX}
    v_lshl_add_u32 v2, v{A_LANE}, 2, s{sT1}
    s_mov_b32 s{sT2}, {f32(2.0**30)}
    s_mov_b32 s{sT3}, {f32(2.0**-30)}
    s_lshl_b32 s{sT1}, s{sWAVE}, 11
    s_add_u32 s{sT1}, s{sT1}, {L_STASH}
    v_add_u32 v3, s{sT1}, v{A_VK}
    ds_write_b128 v1, {vr(A_OB,4)}
    ds_write_b128 v1, {vr(A_OB+4,4)} offset:1024
    ds_write_b32 v2, v{A_OB+8}
    v_min_f32 v{A_T+1}, v{A_OA+8}, v{A_OB+8}
    v_add_f32 v{A_T+2}, v{A_OA+8}, v{A_OB+8}
    v_cmp_nle_f32 vcc, v{A_T+2}, s{sT2}
    v_cmp_nge_f32 {sp(sP)}, v{A_T+1}, s{sT3}
    s_or_b64 vcc, vcc, {sp(sP)}
    s_cbranch_vccz {l_ok}
    v_mov_b32 v{A_T}, {L_BAD}
    v_mov_b32 v{A_T+1}, 1
    ds_write_b32 v{A_T}, v{A_T+1}
    {l_ok}:
    s_lshl_b32 s{sT1}, s{sWAVE}, 8
    s_add_u32 s{sT1}, s{sT1}, {L_LX}
    v_lshl_add_u32 v2, v{A_LANE}, 2, s{sT1}
    v_mov_b32 v{A_T+3}, {L_BAD}
    v_mov_b32 v{A_T+2}, v2""")
    g.tail_addrs()
    g.e(f"""s_waitcnt lgkmcnt(0)
    s_barrier
    ds_read_b32 v{A_T+3}, v{A_T+3}
    ds_read_b32 v{A_T}, v{A_T+2}
    ds_read_b128 {vr(A_SA,4)}, v3
    ds_read_b128 {vr(A_SA+4,4)}, v3 offset:1024""")
    o_store_addr(g, WS_OA, sT2)
    g.e(f"""s_waitcnt lgkmcnt(2)
    v_readfirstlane_b32 s{sT3}, v{A_T+3}
    v_add_f32 v{A_T}, v{A_T}, v{A_OA+8}
    v_rcp_f32 v{A_T}, v{A_T}
    s_cmp_gt_u32 s{sT3}, s{sRETRY}
    s_cbranch_scc1 L_fallback
    v_mul_f32 v{A_T}, v{A_G}, v{A_T}
    s_waitcnt lgkmcnt(0)""")
    for j in range(0, 8, 2):
        g.e(f"v_pk_add_f32 {vr(A_SA+j,2)}, {vr(A_SA+j,2)}, {vr(A_OA+j,2)}")
    for j in range(0, 8, 2):
        g.e(f"v_pk_mul_f32 {vr(A_SA+j,2)}, {vr(A_SA+j,2)}, {vr(A_T,2)} op_sel_hi:[1,0]")
    cvt_block(g, A_OB, A_SA, 8)
    g.e(f"""v_min_u32 v{A_OB}, -2, v{A_OB}
    buffer_store_dwordx4 {vr(A_OB,4)}, v{A_VK}, {srd(SRD_WS)}, s{sT2} offen sc1""")
    g.stamp(8)
    assert L_WOB == 0

    def oa_loads():
        o_frag_addr(g, WS_OA)
        for i in range(8):
            o_frag_load(g, A_SA, i)
        g.e(f"s_mov_b32 s{sSPIN}, {SPIN_MAX}")
    outproj_part(g, A_OBF, A_WB, True, oa_loads, g.opt.get("midat", 6))
    g.stamp(9)
    g.tail_addrs2()
    g.e("s_barrier")
    g.stamp(10)
    outproj_part(g, A_SA, A_WB + 2, False)
    g.stamp(11)
    g.e("s_nop 10")
    for j in (1, 2, 3):
        g.e(f"ds_write_b128 v{A_RA+j}, {vr(A_ACC+8*j,4)}\nds_write_b128 v{A_RA+j}, {vr(A_ACC+8*j+4,4)} offset:1024")
    g.e("s_waitcnt lgkmcnt(0)\ns_barrier")
    for j in range(3):
        g.e(f"ds_read_b128 {vr(A_SA+8*j,4)}, v{A_RA} offset:{j*2048}")
        g.e(f"ds_read_b128 {vr(A_SA+8*j+4,4)}, v{A_RA} offset:{j*2048+1024}")
    for j in range(3):
        g.e(f"s_waitcnt lgkmcnt({4-2*j})")
        for i in range(0, 8, 2):
            g.e(f"v_pk_add_f32 {vr(A_ACC+i,2)}, {vr(A_ACC+i,2)}, {vr(A_SA+8*j+i,2)}")
    cvt_block(g, A_OA, A_ACC, 8)
    g.e(f"""s_nop 1
    v_permlane32_swap_b32 v{A_OA}, v{A_OA+2}
    v_permlane32_swap_b32 v{A_OA+1}, v{A_OA+3}
    buffer_store_dwordx4 {vr(A_OA,4)}, v{A_OUTX}, {srd(SRD_OUT)}, 0 offen {g.opt.get('outmod','')}""")
    if g.opt.get("diag"):
        g.e("s_waitcnt vmcnt(0)")
        g.stamp(12)
        g.e(f"""s_lshl_b32 s{sT0}, s2, 3
        s_add_u32 s{sT0}, s{sT0}, s{sWAVE}
        s_lshl_b32 s{sT0}, s{sT0}, 6
        s_add_u32 s{sT0}, s{sT0}, {WS_DIAG}
        v_mov_b32 v1, 0""")
        for i in range(16):
            g.e(f"v_mov_b32 v{16+i}, s{sST0+i}")
        g.e("s_mov_b64 exec, 1")
        for i in range(4):
            g.e(f"buffer_store_dwordx4 {vr(16+4*i,4)}, v1, {srd(SRD_WS)}, s{sT0} offen offset:{16*i}")
    g.e("L_end:\ns_endpgm")


def fallback(g):
    M = A_T
    g.e(f"""L_fallback:
    s_mov_b32 s{sRETRY}, 1
    s_waitcnt vmcnt(0) lgkmcnt(0)
    v_mov_b32 v{M}, 0xff800000
    v_mov_b32 v{M+1}, 0xff800000
    s_mov_b32 s{sT4}, 0
    L_fb_loop:
    s_add_u32 s{sT0}, s{sT4}, s{sKVB}
    buffer_load_dwordx4 {vr(A_K,4)}, v{A_VK}, {srd(SRD_WS)}, s{sT0} offen sc1
    s_waitcnt vmcnt(0)
    v_mfma_f32_32x32x16_bf16 {vr(A_SA,16)}, {vr(A_K,4)}, {vr(A_Q,4)}, 0
    v_mfma_f32_32x32x16_bf16 {vr(A_SB,16)}, {vr(A_K,4)}, {vr(A_Q+4,4)}, 0
    s_nop 11""")
    for i in range(0, 16, 2):
        g.e(f"v_max3_f32 v{M}, v{A_SA+i}, v{A_SA+i+1}, v{M}")
    for i in range(0, 16, 2):
        g.e(f"v_max3_f32 v{M+1}, v{A_SB+i}, v{A_SB+i+1}, v{M+1}")
    g.e(f"""s_add_u32 s{sT4}, s{sT4}, 2048
    s_cmp_lt_u32 s{sT4}, 65536
    s_cbranch_scc1 L_fb_loop
    v_mov_b32 v{M+2}, v{M}
    v_mov_b32 v{M+3}, v{M+1}
    s_nop 1
    v_permlane32_swap_b32 v{M}, v{M+2}
    v_permlane32_swap_b32 v{M+1}, v{M+3}
    v_max_f32 v{M}, v{M}, v{M+2}
    v_max_f32 v{M+1}, v{M+1}, v{M+3}
    s_lshl_b32 s{sT0}, s{sWAVE}, 9
    s_add_u32 s{sT0}, s{sT0}, {L_MX}
    v_lshl_add_u32 v1, v{A_LANE}, 2, s{sT0}
    v_xor_b32 v2, 2048, v1
    ds_write_b32 v1, v{M}
    ds_write_b32 v1, v{M+1} offset:256
    s_waitcnt lgkmcnt(0)
    s_barrier
    ds_read_b32 v{M+2}, v2 offset:256
    ds_read_b32 v{M+3}, v2
    s_waitcnt lgkmcnt(0)
    v_max_f32 v{M}, v{M}, v{M+2}
    v_max_f32 v{M+1}, v{M+1}, v{M+3}""")
    for i in range(16):
        g.e(f"v_sub_f32 v{A_CA+i}, 0, v{M}\nv_sub_f32 v{A_CB+i}, 0, v{M+1}")
    att_prefetch(g, 4, 4)
    zero_o(g)
    for i in range(0, 8, 2):
        g.e(f"v_mov_b64 {vr(A_SB+8+i,2)}, 0")
    g.e(f"""s_waitcnt vmcnt(6)
    v_mfma_f32_32x32x16_bf16 {vr(A_SA,16)}, {vr(A_K,4)}, {vr(A_Q,4)}, {vr(A_CA,16)}""")
    g.e(f"s_nop 11\ns_mov_b32 s{sT4}, 8\nL_fb_run:")
    for t in range(4):
        att_step(g, t, 4, True)
        kv_group(g, t + 4, 4)
        g.e("s_waitcnt vmcnt(6)")
    g.e(f"""s_sub_u32 s{sT4}, s{sT4}, 1
    s_cmp_lg_u32 s{sT4}, 0
    s_cbranch_scc1 L_fb_run
    v_smfmac_f32_32x32x32_bf16 {vr(A_OB,16)}, {vr(A_V1+12,4)}, {vr(A_SB+8,8)}, v{A_IDX}
    s_waitcnt vmcnt(0)
    s_branch L_attn_done""")


HEADER = """; Fused kernel: QKV projections (both branches) -> softmax attention + linear attention -> gated
; output projection.  One workgroup per CU: (row block of 64 tokens) x (4 heads).
; @launch grid=(256,1,1) block=(512,1,1) lds=%d
.amdgcn_target "amdgcn-amd-amdhsa--gfx950"
.text
.globl %s
.p2align 8
.type %s,@function
%s:
"""

FOOTER = """L_codeend:
.section .rodata,"a"
.p2align 6
.amdhsa_kernel %s
  .amdhsa_next_free_vgpr 256
  .amdhsa_next_free_sgpr 102
  .amdhsa_accum_offset 256
  .amdhsa_group_segment_fixed_size 0
  .amdhsa_kernarg_size 80
  .amdhsa_user_sgpr_count 2
  .amdhsa_user_sgpr_kernarg_segment_ptr 1
  .amdhsa_system_sgpr_workgroup_id_x 1
.end_amdhsa_kernel
"""


def generate(opt):
    g = G(opt)
    prologue(g)
    loader(g)
    g.e(f"L_compute:\ns_cmp_ge_u32 s{sWAVE}, 2\ns_cbranch_scc1 L_compute1")
    compute(g, 0)
    g.e("L_compute1:")
    compute(g, 1)
    attention(g)
    oa_retry_stubs(g)
    fallback(g)
    body = "\n".join(g.o) + "\n"
    errs = hazard.check(body, "gen")
    if errs:
        print("\n".join(errs), file=sys.stderr)
        raise SystemExit("hazards found")
    return HEADER % (LDS_BYTES, KNAME, KNAME, KNAME) + body + FOOTER % KNAME


if __name__ == "__main__":
    opt = {}
    out = "gated_mix__softmax_full_mha__linear_attn_block__prompt.s"
    for a in sys.argv[1:]:
        if "=" in a:
            k, v = a.split("=", 1)
            if k == "out":
                out = v
            else:
                try:
                    opt[k] = [int(x) for x in v.split(",")] if "," in v else int(v, 0)
                except ValueError:
                    opt[k] = v
    open(out, "w").write(generate(opt))
    print("wrote", out)
```

```python
import sys
K = "gated_mix__softmax_full_mha__linear_attn_block__prompt_kernel"
def leak(src):
    src = src.replace(K + ":\n", K + ":\n    s_memrealtime s[86:87]\n", 1)
    tail = """    s_waitcnt vmcnt(0)
    s_memrealtime s[88:89]
    s_and_b32 s49, s47, 3
    s_cmp_eq_u32 s49, 0
    s_cbranch_scc0 L_end
    s_waitcnt lgkmcnt(0)
    s_not_b32 s51, s86
    v_mov_b32 v2, s88
    v_mov_b32 v4, s51
    v_mov_b32 v3, 16
    s_mov_b64 exec, 1
    buffer_atomic_umax v2, v3, s[36:39], 0 offen
    buffer_atomic_umax v4, v3, s[36:39], 0 offen offset:128
    s_add_u32 s49, s2, s47
    s_cmp_eq_u32 s49, 0
    s_cbranch_scc0 L_end
    s_add_u32 s50, s86, 7000
L_lk1:
    s_memrealtime s[88:89]
    s_waitcnt lgkmcnt(0)
    s_sub_u32 s49, s88, s50
    s_cmp_lt_i32 s49, 0
    s_cbranch_scc1 L_lk1
    buffer_load_dword v4, v3, s[36:39], 0 offen sc1
    buffer_load_dword v5, v3, s[36:39], 0 offen offset:128 sc1
    s_waitcnt vmcnt(0)
    v_readfirstlane_b32 s52, v4
    v_readfirstlane_b32 s51, v5
    s_not_b32 s51, s51
    s_sub_u32 s52, s52, s51
    s_min_u32 s52, s52, 10000
    s_mul_i32 s52, s52, 10
    s_add_u32 s50, s51, s52
    s_add_u32 s50, s50, 10000
L_lk2:
    s_memrealtime s[88:89]
    s_waitcnt lgkmcnt(0)
    s_sub_u32 s49, s88, s50
    s_cmp_lt_i32 s49, 0
    s_cbranch_scc1 L_lk2
L_end:
"""
    assert src.count("L_end:\n") == 1
    return src.replace("L_end:\n", tail, 1)
if __name__ == "__main__":
    open(sys.argv[2], "w").write(leak(open(sys.argv[1]).read()))
```
